```python
import torch

def _softmax(x, axis=-1):
    return torch.softmax(x, dim=axis)
def _gelu(x):
    return torch.nn.functional.gelu(x, approximate="tanh")
def _silu(x):
    return torch.nn.functional.silu(x)
def _sigmoid(x):
    return torch.sigmoid(x)
def _layernorm(x, axis=-1, eps=1e-5):
    m = x.mean(dim=axis, keepdim=True)
    v = x.var(dim=axis, keepdim=True, unbiased=False)
    return (x - m) / torch.sqrt(v + eps)
def _scatter_add(tgt, idx, src, axis=0):
    return tgt.clone().index_add_(axis, idx, src)
def _segment_sum(src, seg, n):
    out = torch.zeros((n,) + src.shape[1:], dtype=src.dtype)
    return out.index_add_(0, seg, src)
def _pad(x, pw):
    flat = tuple(v for pair in reversed(pw) for v in pair)
    return torch.nn.functional.pad(x, flat)

kernel_name = 'sequential_preLN__gqa_block_cached__dense_activation_gelu__decode'

def setup_inputs():

    _w = (lambda a: (lambda t: t.to(torch.bfloat16) if t.is_floating_point() else t)(torch.as_tensor(a)))
    def _A_setup():
        B, Sq, D = 2, 1, 512
        Hq, Hkv, Sk, Dh = 32, 8, 32768, 128
        assert Hq % Hkv == 0, (Hq, Hkv)
        return {
            "x": _w((lambda *s: torch.randn(*s, dtype=torch.bfloat16) * 0.1)(B, Sq, D)),
            "k_cache": _w((lambda *s: torch.randn(*s, dtype=torch.bfloat16) * 1.6)(B, Hkv, Sk, Dh)),
            "v_cache": _w((lambda *s: torch.randn(*s, dtype=torch.bfloat16) * 1.6)(B, Hkv, Sk, Dh)),
            "wq": _w((lambda *s: torch.randn(*s, dtype=torch.bfloat16) * 1.6)(D, Hq * Dh) * (D ** -0.5)),
            "wo": _w((lambda *s: torch.randn(*s, dtype=torch.bfloat16) * 1.6)(Hq * Dh, D) * ((Hq * Dh) ** -0.5)),
        }
    _A_in = _A_setup()

    def _B_setup():
        B, S, D, F = 2, 1, 512, 1792
        return {
            "x": _w((lambda *s: torch.randn(*s, dtype=torch.bfloat16) * 0.1)(B, S, D)),
            "w1": _w((lambda *s: torch.randn(*s, dtype=torch.bfloat16) * 3.2)(D, F) * (D ** -0.5)),
            "b1": _w((lambda *s: torch.randn(*s, dtype=torch.bfloat16) * 3.2)(F) * 0.01),
            "w2": _w((lambda *s: torch.randn(*s, dtype=torch.bfloat16) * 3.2)(F, D) * (F ** -0.5)),
            "b2": _w((lambda *s: torch.randn(*s, dtype=torch.bfloat16) * 3.2)(D) * 0.01),
        }
    _B_in = _B_setup()

    return {
        "A_x": _A_in["x"],
        "A_k_cache": _A_in["k_cache"],
        "A_v_cache": _A_in["v_cache"],
        "A_wq": _A_in["wq"],
        "A_wo": _A_in["wo"],
        "B_x": _B_in["x"],
        "B_w1": _B_in["w1"],
        "B_b1": _B_in["b1"],
        "B_w2": _B_in["w2"],
        "B_b2": _B_in["b2"],
    }

def reference(A_x, A_k_cache, A_v_cache, A_wq, A_wo, B_x, B_w1, B_b1, B_w2, B_b2):
    def _A_ref(x, k_cache, v_cache, wq, wo):
        B, Sq, D = x.shape
        Hq, Dh = 32, 128
        Hkv = k_cache.shape[1]
        rep = Hq // Hkv
        q = (lambda x, *d: x.permute(*d))((x @ wq).reshape(B, Sq, Hq, Dh), 0, 2, 1, 3)
        k = (lambda x, n, axis: torch.repeat_interleave(x, n, dim=axis))(k_cache, rep, axis=1)
        v = (lambda x, n, axis: torch.repeat_interleave(x, n, dim=axis))(v_cache, rep, axis=1)
        scores = torch.einsum("bhqd,bhkd->bhqk", q, k) * (Dh ** -0.5)
        p = _softmax(scores, axis=-1)
        o = torch.einsum("bhqk,bhkd->bhqd", p, v)
        return (lambda x, *d: x.permute(*d))(o, 0, 2, 1, 3).reshape(B, Sq, Hq * Dh) @ wo

    def _B_ref(x, w1, b1, w2, b2):
        h = torch.einsum("bsd,df->bsf", x, w1) + b1
        h = _gelu(h)
        return torch.einsum("bsf,fd->bsd", h, w2) + b2

    x = A_x
    h = x + _A_ref(_layernorm(x, axis=-1), A_k_cache, A_v_cache, A_wq, A_wo)
    h2 = h + _B_ref(_layernorm(h, axis=-1), B_w1, B_b1, B_w2, B_b2)
    return h2
```

```python
import math
import struct
import sys

from asmlib import Asm, kernel_header, kernel_desc
from hazard import insert_nops, check_edges

NAME = "sequential_preLN__gqa_block_cached__dense_activation_gelu__decode_kernel"


def f2u(x):
    return struct.unpack("<I", struct.pack("<f", x))[0]


EPOCH_OFF = 0
QB_OFF = 0x1000
H1_OFF = 0x10000
ML_OFF = 0x90000
H2_OFF = 0xA0000
H3_OFF = 0xC0000
H4_OFF = 0xD0000
MODE_OFF = 0xF9000
CTR_OFF = 0xF8000
STAMP_OFF = 0x100000

RING = 0
MISC = 131072
L_STAGE = MISC
L_XN = MISC + 16384
L_RED = MISC + 24576
L_Q = MISC + 25600
L_ML = MISC + 26624
L_OC = MISC + 26880
L_G = MISC + 27392
L_ID = MISC + 27648
LDS_BYTES = 163840

CSCALE = math.log2(math.e)
SCALE = 128.0 ** -0.5
SPIN_LIMIT = 400000

S_WAVE = "s3"
S_X, S_K, S_V, S_WQ = "s[4:5]", "s[6:7]", "s[8:9]", "s[10:11]"
S_WS = "s[28:29]"
S_EPOCH, S_TAG, S_MODE = "s30", "s31", "s62"
SRD_K, SRD_V, SRD_W = "s[32:35]", "s[36:39]", "s[40:43]"
S_G, S_SPLIT, S_I, S_C, S_TAIL = "s44", "s45", "s46", "s47", "s48"
S_RING, S_NB = "s49", "s52"
S_CNT, S_FSTEP = "s93", "s94"
S_OFF = ["s50", "s51"]
S_STEP, S_STAT, S_START, S_AFLAG, S_WOFF = "s80", "s81", "s82", "s83", "s84"
S_T1, S_T2, S_T3, S_T4 = "s85", "s86", "s87", "s93"
S_PEND, S_RL, S_THR, S_BUF = "s88", "s89", "s95", "s97"
S_UNIT = ["s98", "s99"]
S_HALF = "s100"
V_A, V_CTRA, V_IDA, V_ID, V_RDY = 107, 108, 109, 110, 15
S_SC = "s92"
S_XCC, S_SPIN = "s60", "s61"
S_SLOT, S_PROD = "s101", "s93"
S_CS = "s63"

V_LANE, V_TID = "v0", "v3"
KD = [4, 5, 6, 7]
VD = [8, 9]
VQ, VO, VK, VV, VS, VP = 16, 32, 64, 80, 96, 100
V_M, V_L, V_MC = 102, 103, 104
KA = [112, 113, 114, 115]
VA = [116 + t for t in range(8)]
V_XRES, V_B2, V_B1, V_FLAG = 124, 125, 126, 127
V_TAG8, S_FF = 14, "s96"
V_CTR, V_ONE, V_TILE = 107, 108, 109


def vr(a, n=1):
    return "v%d" % a if n == 1 else "v[%d:%d]" % (a, a + n - 1)


def ar(a, n=1):
    return "a%d" % a if n == 1 else "a[%d:%d]" % (a, a + n - 1)


class Gen:
    def __init__(self, cfg):
        self.cfg = cfg
        self.a = Asm()
        self.nstamp = 0

    def stamp2(self, idx):
        if self.cfg.get("diag") == 2:
            self.stamp(idx, True)

    def stamp(self, idx, force=False):
        if not self.cfg.get("diag"):
            return
        if self.cfg.get("diag") in (2, 3) and 1 <= idx <= 6 and not force:
            return
        a = self.a
        a("s_memrealtime s[90:91]")
        a("s_waitcnt lgkmcnt(0)")
        a("s_mov_b32 s%d, s90" % (64 + idx))

    def stamp_end(self):
        pass

    def mask64(self, lo, val):
        self.a("s_mov_b32 s%d, 0x%08x" % (lo, val & 0xffffffff))
        self.a("s_mov_b32 s%d, 0x%08x" % (lo + 1, val >> 32))

    def bf16r(self, dst, src):
        a = self.a
        a("v_cvt_pk_bf16_f32 %s, %s, %s" % (dst, src, src))
        a("v_and_b32 %s, 0xffff0000, %s" % (dst, dst))

    def allreduce_hi(self, op, x, t):
        a = self.a
        a("v_mov_b32 %s, %s" % (t, x))
        a("v_permlane16_swap_b32 %s, %s" % (x, t))
        a("%s %s, %s, %s" % (op, x, x, t))
        a("v_mov_b32 %s, %s" % (t, x))
        a("v_permlane32_swap_b32 %s, %s" % (x, t))
        a("%s %s, %s, %s" % (op, x, x, t))

    def dpp(self, op, x, ctrl):
        self.a("%s_dpp %s, %s, %s %s row_mask:0xf bank_mask:0xf" % (op, x, x, x, ctrl))

    def ln_addr(self, addr, t):
        a = self.a
        a("v_bfe_u32 %s, %s, 2, 1" % (t, V_LANE))
        a("v_lshlrev_b32 %s, 10, %s" % (addr, t))
        a("v_lshrrev_b32 %s, 3, %s" % (t, V_LANE))
        a("v_lshl_add_u32 %s, %s, 5, %s" % (addr, t, addr))
        a("v_and_b32 %s, 3, %s" % (t, V_LANE))
        a("v_lshl_add_u32 %s, %s, 3, %s" % (addr, t, addr))
        a("v_add_u32 %s, %d, %s" % (addr, L_XN, addr))

    def layernorm(self, X, T, addr=None):
        a = self.a
        s2, q2, mp = vr(T, 2), vr(T + 2, 2), vr(T + 4, 2)
        s, q, mean, t = vr(T), vr(T + 2), vr(T + 4), vr(T + 5)
        t1, t2 = vr(T + 1), vr(T + 3)
        if addr is None:
            addr = vr(T + 6)
            self.ln_addr(addr, t)
        a("v_pk_add_f32 %s, %s, %s" % (s2, vr(X, 2), vr(X + 2, 2)))
        a("v_pk_mul_f32 %s, %s, %s" % (q2, vr(X, 2), vr(X, 2)))
        a("v_pk_fma_f32 %s, %s, %s, %s" % (q2, vr(X + 2, 2), vr(X + 2, 2), q2))
        for k in range(4, 16, 2):
            a("v_pk_add_f32 %s, %s, %s" % (s2, s2, vr(X + k, 2)))
            a("v_pk_fma_f32 %s, %s, %s, %s" % (q2, vr(X + k, 2), vr(X + k, 2), q2))
        a("v_add_f32 %s, %s, %s" % (s, s, t1))
        a("v_add_f32 %s, %s, %s" % (q, q, t2))
        for ctrl in ("quad_perm:[1,0,3,2]", "quad_perm:[2,3,0,1]", "row_ror:8"):
            self.dpp("v_add_f32", s, ctrl)
            self.dpp("v_add_f32", q, ctrl)
        for swap in ("v_permlane16_swap_b32", "v_permlane32_swap_b32"):
            a("v_mov_b32 %s, %s" % (t1, s))
            a("v_mov_b32 %s, %s" % (t2, q))
            a("%s %s, %s" % (swap, s, t1))
            a("%s %s, %s" % (swap, q, t2))
            a("v_add_f32 %s, %s, %s" % (s, s, t1))
            a("v_add_f32 %s, %s, %s" % (q, q, t2))
        a("v_mul_f32 %s, 0x%08x, %s" % (mean, f2u(1.0 / 512), s))
        a("v_mul_f32 %s, 0x%08x, %s" % (q, f2u(1.0 / 512), q))
        a("v_fma_f32 %s, -%s, %s, %s" % (s, mean, mean, q))
        a("v_max_f32 %s, 0, %s" % (s, s))
        self.bf16r(s, s)
        a("v_add_f32 %s, 0x%08x, %s" % (s, f2u(1e-5), s))
        self.bf16r(s, s)
        a("v_sqrt_f32 %s, %s" % (s, s))
        self.bf16r(mean, mean)
        self.bf16r(s, s)
        a("v_rcp_f32 %s, %s" % (s, s))
        for k in range(0, 16, 2):
            a("v_pk_add_f32 %s, %s, %s op_sel_hi:[1,0] neg_lo:[0,1] neg_hi:[0,1]" % (vr(X + k, 2), vr(X + k, 2), mp))
        for k in range(0, 16, 2):
            a("v_cvt_pk_bf16_f32 %s, %s, %s" % (q, vr(X + k), vr(X + k + 1)))
            a("v_and_b32 %s, 0xffff0000, %s" % (vr(X + k + 1), q))
            a("v_lshlrev_b32 %s, 16, %s" % (vr(X + k), q))
        for k in range(0, 16, 2):
            a("v_pk_mul_f32 %s, %s, %s op_sel_hi:[1,0]" % (vr(X + k, 2), vr(X + k, 2), s2))
        for jj in range(4):
            b = X + 4 * jj
            a("v_cvt_pk_bf16_f32 %s, %s, %s" % (vr(b), vr(b), vr(b + 1)))
            a("v_cvt_pk_bf16_f32 %s, %s, %s" % (vr(b + 1), vr(b + 2), vr(b + 3)))
            a("ds_write_b64 %s, %s offset:%d" % (addr, vr(b, 2), 256 * jj))

    def poll(self, lbl, issue, regs, tmp, full=(), backoff=None):
        a = self.a
        a("s_mov_b32 %s, 0" % S_SPIN)
        a(lbl + ":")
        issue()
        a("s_add_u32 %s, %s, 1" % (S_SPIN, S_SPIN))
        a("s_waitcnt vmcnt(0)")
        rs = list(regs)
        if self.cfg.get("tags", 1):
            t_and, t_or = vr(tmp), vr(tmp + 1)
            a("v_bitop3_b32 %s, %s, %s, %s bitop3:0x80" % (t_and, vr(rs[0]), vr(rs[1]), vr(rs[2])))
            a("v_or3_b32 %s, %s, %s, %s" % (t_or, vr(rs[0]), vr(rs[1]), vr(rs[2])))
            k = 3
            while k < len(rs):
                r2 = rs[k + 1] if k + 1 < len(rs) else rs[k]
                a("v_bitop3_b32 %s, %s, %s, %s bitop3:0x80" % (t_and, t_and, vr(rs[k]), vr(r2)))
                a("v_or3_b32 %s, %s, %s, %s" % (t_or, t_or, vr(rs[k]), vr(r2)))
                k += 2
            a("v_xor_b32 %s, %s, %s" % (t_and, t_and, vr(V_TAG8)))
            a("v_xor_b32 %s, %s, %s" % (t_or, t_or, vr(V_TAG8)))
            a("v_or_b32 %s, %s, %s" % (t_and, t_and, t_or))
            a("v_and_b32 %s, 0xff, %s" % (t_and, t_and))
            for r in full:
                a("v_xor_b32 %s, %s, %s" % (t_or, S_TAG, vr(r)))
                a("v_or_b32 %s, %s, %s" % (t_and, t_and, t_or))
            a("v_cmp_ne_u32 vcc, 0, %s" % t_and)
        else:
            tmp = vr(tmp)
            a("v_max_u32 %s, %s, %s" % (tmp, vr(rs[0]), vr(rs[1])))
            k = 2
            while k < len(rs):
                if k + 1 < len(rs):
                    a("v_max3_u32 %s, %s, %s, %s" % (tmp, tmp, vr(rs[k]), vr(rs[k + 1])))
                    k += 2
                else:
                    a("v_max_u32 %s, %s, %s" % (tmp, tmp, vr(rs[k])))
                    k += 1
            a("v_cmp_eq_u32 vcc, -1, %s" % tmp)
        a("s_cmp_gt_u32 %s, %d" % (S_SPIN, SPIN_LIMIT))
        a("s_cbranch_scc1 %s_done" % lbl)
        a("s_and_b64 exec, exec, vcc")
        if backoff:
            thr, slp = backoff
            a("s_cbranch_execz %s_done" % lbl)
            a("s_bcnt1_i32_b64 s53, exec")
            a("s_cmp_le_u32 s53, %d" % thr)
            a("s_cbranch_scc1 %s" % lbl)
            a("s_sleep %d" % slp)
            a("s_branch %s" % lbl)
        a("s_cbranch_execnz %s" % lbl)
        a(lbl + "_done:")
        a("s_mov_b64 exec, -1")

    def tagged(self, dst, src):
        if self.cfg.get("tags", 1):
            self.a("v_bfi_b32 %s, %s, %s, %s" % (dst, S_FF, vr(V_TAG8), src))
        elif dst != src:
            self.a("v_mov_b32 %s, %s" % (dst, src))

    def reduce8(self, r, t):
        a = self.a
        for k in range(4):
            self.dpp("v_add_f32", vr(r + k), "row_ror:8")
        a("v_permlane16_swap_b32 %s, %s" % (vr(r), vr(r + 1)))
        a("v_permlane16_swap_b32 %s, %s" % (vr(r + 2), vr(r + 3)))
        a("v_add_f32 %s, %s, %s" % (vr(r), vr(r), vr(r + 1)))
        a("v_add_f32 %s, %s, %s" % (vr(r + 2), vr(r + 2), vr(r + 3)))
        a("v_permlane32_swap_b32 %s, %s" % (vr(r), vr(r + 2)))
        a("v_add_f32 %s, %s, %s" % (vr(r), vr(r), vr(r + 2)))

    def pub_store(self, tag, emit):
        a = self.a
        a("s_cmp_eq_u32 %s, 0" % S_MODE)
        a("s_cbranch_scc1 L_pl_%s" % tag)
        emit(" sc1")
        a("s_branch L_pd_%s" % tag)
        a("L_pl_%s:" % tag)
        emit("")
        a("L_pd_%s:" % tag)

    def dma_k(self, par):
        a = self.a
        a("s_add_u32 m0, %s, %d" % (S_RING, 8192 * par))
        a("s_nop 0")
        for j in range(4):
            a("buffer_load_dwordx4 %s, %s, %s offen offset:%d%s lds" % (vr(KD[j]), SRD_K, S_OFF[par], 1024 * j, self.cfg.get("kflags", " nt")))

    def dma_v(self, par):
        a = self.a
        a("s_add_u32 m0, %s, %d" % (S_RING, 8192 * par + 4096))
        a("s_nop 0")
        for j in range(4):
            a("buffer_load_dwordx4 %s, %s, %s offen offset:%d%s lds" % (vr(VD[j & 1]), SRD_V, S_OFF[par], 1024 * j, self.cfg.get("vflags", self.cfg.get("kflags", " nt"))))

    def set_srd_w(self, lo, hi, nbytes):
        a = self.a
        a("s_mov_b32 s40, %s" % lo)
        a("s_mov_b32 s41, %s" % hi)
        a("s_mov_b32 s42, 0x%x" % nbytes)
        a("s_mov_b32 s43, 0x20000")

    def dma_wtile(self, slot, voff, sbase, step, flags):
        if self.cfg.get("x_now") and voff == "v14" or (self.cfg.get("x_now") == 2 and voff == "v13" and step != 8 * 8192 - 1024):
            a = self.a
            a("s_add_u32 m0, %s, %d" % (S_RING, 4096 * slot))
            a("s_mov_b32 s53, 0")
            for j in range(4):
                a("buffer_load_dwordx4 v4, %s, s53 offen offset:%d lds" % (SRD_W, 1024 * j))
            return
        return self.dma_wtile_real(slot, voff, sbase, step, flags)

    def dma_wtile_real(self, slot, voff, sbase, step, flags):
        a = self.a
        a("s_add_u32 m0, %s, %d" % (S_RING, 4096 * slot))
        a("s_mov_b32 s53, %s" % sbase)
        for j in range(4):
            if j:
                a("s_add_u32 s53, s53, %d" % step)
            a("buffer_load_dwordx4 %s, %s, s53 offen offset:%d%s lds" % (voff, SRD_W, 1024 * j, flags))


    def dyn_loop(self, SR, ST, P0):
        a = self.a
        T0, T1 = 105, 106
        mid = self.cfg.get("depth", "shallow") == "mid"

        def ready_byte():
            if self.cfg.get("x_ready"):
                a("v_mov_b32 %s, 0x81" % vr(T0))
                a("s_add_u32 s53, s2, 0xF0000")
                a("v_mov_b32 %s, s53" % vr(T1))
                a("s_mov_b64 exec, 1")
                a("global_store_byte %s, %s, %s sc1" % (vr(T1), vr(T0), S_WS))
                a("s_mov_b64 exec, -1")
                return
            if self.cfg.get("x_noq") or self.cfg.get("x_nowr"):
                a("global_load_ubyte v106, v0, s[26:27] sc1")
                return
            a("s_or_b32 s53, %s, 0x80" % S_XCC)
            a("v_mov_b32 %s, s53" % vr(T0))
            a("v_mov_b32 %s, s2" % vr(T1))
            a("s_mov_b64 exec, 1")
            a("global_store_byte %s, %s, s[26:27] sc1" % (vr(T1), vr(T0)))
            a("s_mov_b64 exec, -1")

        def owner_byte_load():
            if self.cfg.get("dpeek"):
                a("global_load_dword %s, %s, s[26:27] sc1" % (vr(V_RDY), vr(V_CTRA)))
                return
            if self.cfg.get("x_noq") or self.cfg.get("x_nowr"):
                a("global_load_ubyte v106, v0, s[26:27] sc1")
                return
            a("s_lshl_b32 s53, %s, 4" % S_G)
            a("s_add_u32 s53, s53, 1")
            a("v_mov_b32 %s, s53" % vr(T1))
            a("global_load_ubyte %s, %s, s[26:27] sc1" % (vr(V_RDY), vr(T1)))

        a("v_mov_b32 %s, %d" % (vr(V_IDA), L_ID))
        a("s_lshl_b32 s53, %s, 7" % S_G)
        a("s_add_u32 s53, s53, %d" % CTR_OFF)
        a("v_mov_b32 %s, s53" % vr(V_CTRA))
        a("v_mov_b32 %s, 0" % vr(V_A))
        a("v_mov_b32 %s, 0" % vr(V_RDY))
        if self.cfg.get("x_noq") or self.cfg.get("x_nowr") or self.cfg.get("tags", 1):
            a("s_lshl_b32 s53, %s, 4" % S_G)
            a("v_mov_b32 %s, s53" % vr(V_CTRA))
            a("v_mov_b32 %s, 1" % vr(V_RDY))
        a("s_mov_b32 %s, 0" % S_PEND)
        a("s_mov_b32 %s, 0" % S_RL)
        a("s_mov_b32 %s, -1" % S_THR)
        if self.cfg.get("depth") == "tight":
            a("s_cmp_lg_u32 %s, 0" % S_WAVE)
            a("s_cbranch_scc1 L_idinit")
            a("ds_write_b32 %s, %s" % (vr(V_IDA), vr(V_RDY)))
            a("L_idinit:")

        def step(par, tag, first):
            a("s_waitcnt vmcnt(%d)" % (12 if first else 4))
            if self.cfg.get("diag") == 3:
                a("s_memrealtime s[90:91]")
                a("s_waitcnt lgkmcnt(0)")
                a("s_lshl_b32 s53, %s, 2" % S_STEP)
                a("s_lshl_b32 s54, %s, 7" % S_WAVE)
                a("s_add_u32 s53, s53, s54")
                a("s_add_u32 s53, s53, %d" % (MISC + 28672))
                a("v_mov_b32 %s, s53" % vr(T0))
                a("v_mov_b32 %s, s90" % vr(T1))
                a("ds_write_b32 %s, %s" % (vr(T0), vr(T1)))
            if not first:
                a("s_cmp_ge_u32 %s, %s" % (S_OFF[par], S_NB))
                a("s_cbranch_scc1 L_loop_done")
                a("s_cmp_lg_u32 %s, 0" % S_WAVE)
                a("s_cbranch_scc1 L_noid%s" % tag)
                a("v_readfirstlane_b32 s54, %s" % vr(V_A))
                a("s_add_u32 s53, %s, 1" % S_STEP)
                a("s_add_u32 s55, %s, s53" % S_START)
                a("s_add_u32 s54, s54, %d" % P0)
                a("s_cmp_lt_u32 s53, %s" % S_STAT)
                a("s_cselect_b32 s54, s55, s54")
                a("v_mov_b32 %s, s54" % vr(T0))
                a("ds_write_b32 %s, %s offset:%d" % (vr(V_IDA), vr(T0), 4 * par))
                a("L_noid%s:" % tag)
            for j in range(4):
                a("ds_read_b128 %s, %s offset:%d" % (vr(VK + 4 * j, 4), vr(KA[j]), 8192 * par))
            a("s_waitcnt lgkmcnt(0)")
            a("s_barrier")
            if not first:
                a("ds_read_b32 %s, %s offset:%d" % (vr(V_ID), vr(V_IDA), 4 * par))
            a("v_mfma_f32_16x16x32_bf16 %s, %s, %s, 0" % (vr(VS, 4), vr(VK, 4), vr(VQ, 4)))
            a("v_mfma_f32_16x16x32_bf16 %s, %s, %s, %s" % (vr(VS, 4), vr(VK + 4, 4), vr(VQ + 4, 4), vr(VS, 4)))
            if not first:
                a("s_waitcnt lgkmcnt(0)")
                a("v_readfirstlane_b32 s54, %s" % vr(V_ID))
                a("s_nop 0")
                a("s_lshl_b32 s54, s54, 15")
                a("s_add_u32 %s, s54, %s" % (S_OFF[par ^ 1], S_WOFF))
                if not self.cfg.get("xfirst", 1):
                    self.dma_k(par ^ 1)
                a("s_mov_b32 %s, 0" % S_AFLAG)
                a("s_cmp_eq_u32 %s, %s" % (S_STEP, S_T1))
                a("s_cbranch_scc1 L_x1%s" % tag)
                a("s_cmp_eq_u32 %s, %s" % (S_STEP, S_T2))
                a("s_cbranch_scc1 L_x2%s" % tag)
                a("s_cmp_eq_u32 %s, %s" % (S_STEP, S_T4))
                a("s_cbranch_scc1 L_x4%s" % tag)
                a("s_cmp_lt_u32 %s, %s" % (S_STEP, S_T3))
                a("s_cbranch_scc1 L_nograb%s" % tag)
                a("s_cmp_lg_u32 %s, %s" % (S_STEP, S_T3))
                a("s_cbranch_scc1 L_grab%s" % tag)
                a("s_mov_b32 %s, 0" % S_SPIN)
                a("L_own%s:" % tag)
                a("v_readfirstlane_b32 s53, %s" % vr(V_RDY))
                a("s_add_u32 %s, %s, 1" % (S_SPIN, S_SPIN))
                a("s_cmp_lg_u32 s53, 0")
                a("s_cbranch_scc1 L_grab%s" % tag)
                a("s_cmp_gt_u32 %s, %d" % (S_SPIN, SPIN_LIMIT))
                a("s_cbranch_scc1 L_grab%s" % tag)
                owner_byte_load()
                a("s_waitcnt vmcnt(0)")
                a("s_branch L_own%s" % tag)
                a("L_grab%s:" % tag)
                a("v_mov_b32 %s, 1" % vr(T0))
                a("s_mov_b64 exec, 1")
                a("global_atomic_add %s, %s, %s, %s sc0 sc1" % (vr(V_A), vr(V_CTRA), vr(T0), "s[26:27]" if (self.cfg.get("x_noq") or self.cfg.get("x_nowr") or self.cfg.get("tags", 1)) else S_WS))
                a("s_mov_b64 exec, -1")
                a("s_branch L_xdone%s" % tag)
                a("L_x1%s:" % tag)
                ready_byte()
                a("s_branch L_xdone%s" % tag)
                a("L_x2%s:" % tag)
                owner_byte_load()
                a("s_branch L_xdone%s" % tag)
                a("L_x4%s:" % tag)
                a("v_lshlrev_b32 %s, 2, v0" % vr(T1))
                a("global_load_dword %s, %s, s[26:27] sc1" % (vr(V_FLAG), vr(T1)))
                a("L_xdone%s:" % tag)
                a("s_mov_b32 %s, 1" % S_AFLAG)
                a("L_nograb%s:" % tag)
                if self.cfg.get("xfirst", 1):
                    self.dma_k(par ^ 1)
                if mid:
                    self.dma_v(par ^ 1)
            for j in range(2, 4):
                a("v_mfma_f32_16x16x32_bf16 %s, %s, %s, %s" % (vr(VS, 4), vr(VK + 4 * j, 4), vr(VQ + 4 * j, 4), vr(VS, 4)))
            if first:
                a("s_waitcnt vmcnt(8)")
            else:
                a("s_cmp_lg_u32 %s, 0" % S_AFLAG)
                a("s_cbranch_scc1 L_vw%s" % tag)
                a("s_waitcnt vmcnt(%d)" % (8 if mid else 4))
                a("L_vw%s:" % tag)
                a("s_waitcnt vmcnt(%d)" % (9 if mid else 5))
            for t in range(8):
                a("ds_read_b64_tr_b16 %s, %s offset:%d" % (vr(VV + 2 * t, 2), vr(VA[t]), 8192 * par))
            self.softmax_pv(par, tag, lambda: None if (first or mid) else self.dma_v(par ^ 1))
            a("s_add_u32 %s, %s, 1" % (S_STEP, S_STEP))

        def publish_id(par, tag):
            a("s_cmp_lg_u32 %s, 0" % S_WAVE)
            a("s_cbranch_scc1 L_noid%s" % tag)
            a("v_readfirstlane_b32 s54, %s" % vr(V_A))
            a("s_add_u32 s53, %s, 1" % S_STEP)
            a("s_add_u32 s55, %s, s53" % S_START)
            a("s_add_u32 s54, s54, %d" % P0)
            a("s_cmp_lt_u32 s53, %s" % S_STAT)
            a("s_cselect_b32 s54, s55, s54")
            a("v_mov_b32 %s, s54" % vr(T0))
            a("ds_write_b32 %s, %s offset:%d" % (vr(V_IDA), vr(T0), 4 * par))
            a("L_noid%s:" % tag)

        def extras(tag, none_hook=None):
            a("s_cmp_eq_u32 %s, %s" % (S_STEP, S_T1))
            a("s_cbranch_scc1 L_x1%s" % tag)
            a("s_cmp_eq_u32 %s, %s" % (S_STEP, S_T2))
            a("s_cbranch_scc1 L_x2%s" % tag)
            a("s_cmp_eq_u32 %s, %s" % (S_STEP, S_T4))
            a("s_cbranch_scc1 L_x4%s" % tag)
            a("s_cmp_lt_u32 %s, %s" % (S_STEP, S_T3))
            if none_hook is None:
                a("s_cbranch_scc1 L_xdone%s" % tag)
            else:
                a("s_cbranch_scc0 L_xsome%s" % tag)
                none_hook()
                a("s_branch L_xdone%s" % tag)
                a("L_xsome%s:" % tag)
            a("s_cmp_lg_u32 %s, %s" % (S_STEP, S_T3))
            a("s_cbranch_scc1 L_grab%s" % tag)
            a("s_mov_b32 %s, 0" % S_SPIN)
            a("L_own%s:" % tag)
            a("v_readfirstlane_b32 s53, %s" % vr(V_RDY))
            a("s_add_u32 %s, %s, 1" % (S_SPIN, S_SPIN))
            a("s_cmp_lg_u32 s53, 0")
            a("s_cbranch_scc1 L_grab%s" % tag)
            a("s_cmp_gt_u32 %s, %d" % (S_SPIN, SPIN_LIMIT))
            a("s_cbranch_scc1 L_grab%s" % tag)
            owner_byte_load()
            a("s_waitcnt vmcnt(0)")
            a("s_branch L_own%s" % tag)
            a("L_grab%s:" % tag)
            a("v_mov_b32 %s, 1" % vr(T0))
            a("s_mov_b64 exec, 1")
            a("global_atomic_add %s, %s, %s, %s sc0 sc1" % (vr(V_A), vr(V_CTRA), vr(T0), "s[26:27]" if (self.cfg.get("x_noq") or self.cfg.get("x_nowr") or self.cfg.get("tags", 1)) else S_WS))
            a("s_mov_b64 exec, -1")
            a("s_branch L_xdone%s" % tag)
            a("L_x1%s:" % tag)
            ready_byte()
            a("s_branch L_xdone%s" % tag)
            a("L_x2%s:" % tag)
            owner_byte_load()
            a("s_branch L_xdone%s" % tag)
            a("L_x4%s:" % tag)
            a("v_lshlrev_b32 %s, 2, v0" % vr(T1))
            a("global_load_dword %s, %s, s[26:27] sc1" % (vr(V_FLAG), vr(T1)))
            a("L_xdone%s:" % tag)

        def sstep(par, tag, kind):
            pairm = self.cfg.get("depth") == "dpair"
            if kind == 0:
                kw, vw = 12, 8
            elif kind == 1:
                kw, vw = 4, 0
            else:
                kw, vw = (4 if pairm else 0), 0
            a("s_waitcnt vmcnt(%d)" % kw)
            if self.cfg.get("diag") == 3:
                a("s_memrealtime s[90:91]")
                a("s_waitcnt lgkmcnt(0)")
                a("s_lshl_b32 s53, %s, 2" % S_STEP)
                a("s_lshl_b32 s54, %s, 7" % S_WAVE)
                a("s_add_u32 s53, s53, s54")
                a("s_add_u32 s53, s53, %d" % (MISC + 28672))
                a("v_mov_b32 %s, s53" % vr(T0))
                a("v_mov_b32 %s, s90" % vr(T1))
                a("ds_write_b32 %s, %s" % (vr(T0), vr(T1)))
            if kind == 2:
                a("s_cmp_ge_u32 %s, %s" % (S_OFF[par], S_NB))
                a("s_cbranch_scc1 L_loop_done")
                if not pairm:
                    self.dma_v(par)
            if kind >= 1:
                publish_id(par, tag)
            for j in range(4):
                a("ds_read_b128 %s, %s offset:%d" % (vr(VK + 4 * j, 4), vr(KA[j]), 8192 * par))
            a("s_waitcnt lgkmcnt(0)")
            a("s_barrier")
            if kind >= 1:
                a("ds_read_b32 %s, %s offset:%d" % (vr(V_ID), vr(V_IDA), 4 * par))
            for j in range(4):
                c = "0" if j == 0 else vr(VS, 4)
                a("v_mfma_f32_16x16x32_bf16 %s, %s, %s, %s" % (vr(VS, 4), vr(VK + 4 * j, 4), vr(VQ + 4 * j, 4), c))
            if kind >= 1:
                a("s_waitcnt lgkmcnt(0)")
                a("v_readfirstlane_b32 s54, %s" % vr(V_ID))
                a("s_nop 0")
                a("s_lshl_b32 s54, s54, 15")
                a("s_add_u32 %s, s54, %s" % (S_OFF[par ^ 1], S_WOFF))
            a("s_nop 3")

            def before_pv():
                a("s_waitcnt vmcnt(%d)" % vw)
                if kind >= 1:
                    extras(tag)
                    self.dma_k(par ^ 1)
                    if pairm:
                        self.dma_v(par ^ 1)
                for t in range(8):
                    a("ds_read_b64_tr_b16 %s, %s offset:%d" % (vr(VV + 2 * t, 2), vr(VA[t]), 8192 * par))

            self.softmax_pv(par, tag, lambda: None, before_pv=before_pv)
            a("s_add_u32 %s, %s, 1" % (S_STEP, S_STEP))

        def tstep(par, tag, first):
            if not first:
                a("L_top%s:" % tag)
                a("s_add_u32 s53, %s, 1" % S_STEP)
                a("s_cmp_lt_u32 s53, %s" % S_STAT)
                a("s_cbranch_scc1 L_nopub%s" % tag)
                a("s_cmp_lg_u32 %s, 0" % S_WAVE)
                a("s_cbranch_scc1 L_nopub%s" % tag)
                if self.cfg.get("tailstatic"):
                    a("s_cmp_eq_u32 %s, 0" % S_TAIL)
                    a("s_cselect_b32 s54, 0, 1")
                    a("s_add_u32 s54, s54, 0xfffe")
                else:
                    a("s_mov_b32 s54, 0xffff")
                a("s_cmp_eq_u32 %s, 0" % S_PEND)
                a("s_cbranch_scc1 L_pubw%s" % tag)
                a("s_waitcnt vmcnt(8)")
                a("v_readfirstlane_b32 %s, %s" % (S_RL, vr(V_A)))
                a("s_cmp_lg_u32 %s, -1" % S_THR)
                a("s_cbranch_scc1 L_thr%s" % tag)
                a("s_lshr_b32 s54, %s, %d" % (S_RL, self.cfg.get("dshift", 1)))
                a("s_add_u32 s54, s54, %d" % self.cfg.get("dbase", 12))
                a("s_cmp_ge_u32 %s, %d" % (S_RL, self.cfg.get("dmin", 8)))
                a("s_cselect_b32 %s, s54, 0" % S_THR)
                a("L_thr%s:" % tag)
                a("s_add_u32 s54, %s, %d" % (S_RL, P0))
                a("s_min_u32 s54, s54, 0xfffe")
                a("L_pubw%s:" % tag)
                a("s_lshl_b32 s55, s53, 16")
                a("s_or_b32 s54, s54, s55")
                a("v_mov_b32 %s, s54" % vr(T0))
                a("ds_write_b32 %s, %s" % (vr(V_IDA), vr(T0)))
                a("L_nopub%s:" % tag)
            a("s_waitcnt vmcnt(%d)" % (12 if first else 4))
            if self.cfg.get("diag") == 3:
                a("s_memrealtime s[90:91]")
                a("s_waitcnt lgkmcnt(0)")
                a("s_lshl_b32 s53, %s, 2" % S_STEP)
                a("s_lshl_b32 s54, %s, 7" % S_WAVE)
                a("s_add_u32 s53, s53, s54")
                a("s_add_u32 s53, s53, %d" % (MISC + 28672))
                a("v_mov_b32 %s, s53" % vr(T0))
                a("v_mov_b32 %s, s90" % vr(T1))
                a("ds_write_b32 %s, %s" % (vr(T0), vr(T1)))
            if not first:
                if not self.cfg.get("lastskip"):
                    a("s_cmp_ge_u32 %s, %s" % (S_OFF[par], S_NB))
                    a("s_cbranch_scc1 %s" % (("L_exit%s" % tag) if self.cfg.get("defer", 1) else "L_loop_done"))
                a("s_add_u32 s53, %s, 1" % S_STEP)
                a("s_cmp_lt_u32 s53, %s" % S_STAT)
                a("s_cbranch_scc0 L_dyn%s" % tag)
                a("s_add_u32 s54, %s, s53" % S_START)
                a("s_branch L_gotid%s" % tag)
                a("L_dyn%s:" % tag)
                a("s_mov_b32 %s, 0" % S_SPIN)
                a("L_idspin%s:" % tag)
                a("ds_read_b32 %s, %s" % (vr(V_ID), vr(V_IDA)))
                a("s_add_u32 %s, %s, 1" % (S_SPIN, S_SPIN))
                a("s_waitcnt lgkmcnt(0)")
                a("v_readfirstlane_b32 s54, %s" % vr(V_ID))
                a("s_cmp_gt_u32 %s, %d" % (S_SPIN, SPIN_LIMIT))
                a("s_cbranch_scc1 L_idok%s" % tag)
                a("s_lshr_b32 s55, s54, 16")
                a("s_cmp_lg_u32 s55, s53")
                a("s_cbranch_scc1 L_idspin%s" % tag)
                a("L_idok%s:" % tag)
                a("s_and_b32 s54, s54, 0xffff")
                a("L_gotid%s:" % tag)
                a("s_lshl_b32 s54, s54, 15")
                a("s_add_u32 %s, s54, %s" % (S_OFF[par ^ 1], S_WOFF))
                if self.cfg.get("lastskip"):
                    a("s_cmp_ge_u32 %s, %s" % (S_OFF[par ^ 1], S_NB))
                    a("s_cbranch_scc1 L_nok%s" % tag)
                extras_t(tag)
                self.dma_k(par ^ 1)
                if self.cfg.get("lastskip"):
                    a("L_nok%s:" % tag)
            for j in range(4):
                a("ds_read_b128 %s, %s offset:%d" % (vr(VK + 4 * j, 4), vr(KA[j]), 8192 * par))
            a("s_waitcnt lgkmcnt(0)")
            a("s_barrier")
            if not self.cfg.get("x_nocomp"):
                for j in range(4):
                    c = "0" if j == 0 else vr(VS, 4)
                    a("v_mfma_f32_16x16x32_bf16 %s, %s, %s, %s" % (vr(VS, 4), vr(VK + 4 * j, 4), vr(VQ + 4 * j, 4), c))
                a("s_nop 7")

            def before_pv():
                if first:
                    a("s_waitcnt vmcnt(8)")
                else:
                    if self.cfg.get("lastskip"):
                        a("s_cmp_lt_u32 %s, %s" % (S_OFF[par ^ 1], S_NB))
                        a("s_cbranch_scc1 L_vmore%s" % tag)
                        if self.cfg.get("premerge"):
                            self.merge_pre()
                        a("s_waitcnt vmcnt(0)")
                        a("s_branch L_vrd%s" % tag)
                        a("L_vmore%s:" % tag)
                    a("s_cmp_lg_u32 %s, 0" % S_AFLAG)
                    a("s_cbranch_scc1 L_vw%s" % tag)
                    a("s_waitcnt vmcnt(4)")
                    a("L_vw%s:" % tag)
                    a("s_waitcnt vmcnt(5)")
                    self.dma_v(par ^ 1)
                    if self.cfg.get("lastskip"):
                        a("L_vrd%s:" % tag)
                for t in range(8):
                    a("ds_read_b64_tr_b16 %s, %s offset:%d" % (vr(VV + 2 * t, 2), vr(VA[t]), 8192 * par))

            self.softmax_pv(par, tag, lambda: None, before_pv=before_pv)
            a("s_add_u32 %s, %s, 1" % (S_STEP, S_STEP))
            if self.cfg.get("lastskip") and not first:
                a("s_cmp_ge_u32 %s, %s" % (S_OFF[par ^ 1], S_NB))
                a("s_cbranch_scc1 L_loop_done")

        def extras_t(tag):
            POOL = 256 - P0
            a("s_mov_b32 %s, 1" % S_AFLAG)
            a("s_cmp_eq_u32 %s, %s" % (S_STEP, S_T1))
            a("s_cbranch_scc1 L_x1%s" % tag)
            a("s_cmp_eq_u32 %s, %s" % (S_STEP, S_T2))
            a("s_cbranch_scc1 L_x2%s" % tag)
            a("s_cmp_lt_u32 %s, %s" % (S_STEP, S_T3))
            a("s_cbranch_scc1 L_xnone%s" % tag)
            a("s_cmp_eq_u32 %s, %s" % (S_STEP, S_T3))
            a("s_cbranch_scc1 L_xfirst%s" % tag)
            a("s_cmp_eq_u32 %s, 0" % S_PEND)
            a("s_cbranch_scc1 L_xnone%s" % tag)
            a("s_mov_b32 %s, 0" % S_PEND)
            a("s_cmp_ge_u32 %s, %d" % (S_RL, POOL))
            a("s_cbranch_scc1 L_xnone%s" % tag)
            if self.cfg.get("defer", 1):
                a("s_sub_u32 s54, %d, %s" % (POOL, S_RL))
                a("s_cmp_lt_u32 s54, %s" % S_THR)
                a("s_cbranch_scc1 L_xnone%s" % tag)
            a("s_branch L_grab%s" % tag)
            a("L_xfirst%s:" % tag)
            if self.cfg.get("dpeek"):
                a("v_readfirstlane_b32 s54, %s" % vr(V_RDY))
                a("s_nop 0")
                a("s_cmp_ge_u32 s54, %d" % self.cfg["dpeek"])
                a("s_cbranch_scc1 L_xnone%s" % tag)
                a("s_branch L_grab%s" % tag)
            a("s_mov_b32 %s, 0" % S_SPIN)
            a("L_own%s:" % tag)
            a("v_readfirstlane_b32 s54, %s" % vr(V_RDY))
            a("s_add_u32 %s, %s, 1" % (S_SPIN, S_SPIN))
            a("s_cmp_lg_u32 s54, 0")
            a("s_cbranch_scc1 L_grab%s" % tag)
            a("s_cmp_gt_u32 %s, %d" % (S_SPIN, SPIN_LIMIT))
            a("s_cbranch_scc1 L_grab%s" % tag)
            owner_byte_load()
            a("s_waitcnt vmcnt(0)")
            a("s_branch L_own%s" % tag)
            a("L_grab%s:" % tag)
            a("v_mov_b32 %s, 1" % vr(T0))
            a("s_mov_b64 exec, 1")
            a("global_atomic_add %s, %s, %s, %s sc0 sc1" % (vr(V_A), vr(V_CTRA), vr(T0), "s[26:27]" if (self.cfg.get("x_noq") or self.cfg.get("x_nowr") or self.cfg.get("tags", 1)) else S_WS))
            a("s_mov_b64 exec, -1")
            a("s_mov_b32 %s, 1" % S_PEND)
            a("s_branch L_xdone%s" % tag)
            a("L_x1%s:" % tag)
            ready_byte()
            a("s_branch L_xdone%s" % tag)
            a("L_x2%s:" % tag)
            owner_byte_load()
            a("s_branch L_xdone%s" % tag)
            a("L_xnone%s:" % tag)
            a("s_mov_b32 %s, 0" % S_AFLAG)
            a("L_xdone%s:" % tag)

        def exit_block(par, tag):
            a("L_exit%s:" % tag)
            a("s_sub_u32 s54, %s, %s" % (S_OFF[par], S_WOFF))
            a("s_lshr_b32 s54, s54, 15")
            a("s_cmp_lg_u32 s54, 0xffff")
            a("s_cbranch_scc1 L_loop_done")
            a("s_cmp_lg_u32 %s, 0" % S_WAVE)
            a("s_cbranch_scc1 L_rs%s" % tag)
            a("v_mov_b32 %s, 1" % vr(T0))
            a("s_mov_b64 exec, 1")
            a("global_atomic_add %s, %s, %s, %s sc0 sc1" % (vr(V_A), vr(V_CTRA), vr(T0), "s[26:27]" if (self.cfg.get("x_noq") or self.cfg.get("x_nowr") or self.cfg.get("tags", 1)) else S_WS))
            a("s_mov_b64 exec, -1")
            a("s_waitcnt vmcnt(0)")
            a("v_readfirstlane_b32 %s, %s" % (S_RL, vr(V_A)))
            a("s_nop 0")
            a("s_add_u32 s54, %s, %d" % (S_RL, P0))
            a("s_min_u32 s54, s54, 0xfffe")
            a("v_mov_b32 %s, s54" % vr(T0))
            a("ds_write_b32 %s, %s offset:4" % (vr(V_IDA), vr(T0)))
            a("s_waitcnt lgkmcnt(0)")
            a("L_rs%s:" % tag)
            a("s_barrier")
            a("ds_read_b32 %s, %s offset:4" % (vr(V_ID), vr(V_IDA)))
            a("s_waitcnt lgkmcnt(0)")
            a("v_readfirstlane_b32 s54, %s" % vr(V_ID))
            a("s_nop 0")
            a("s_cmp_ge_u32 s54, 256")
            a("s_cbranch_scc1 L_loop_done")
            a("s_lshl_b32 s54, s54, 15")
            a("s_add_u32 %s, s54, %s" % (S_OFF[par], S_WOFF))
            a("s_waitcnt vmcnt(0)")
            self.dma_k(par)
            self.dma_v(par)
            a("s_mov_b32 %s, 0" % S_PEND)
            a("s_branch L_top%s" % tag)

        def extras_af(tag):
            a("s_mov_b32 %s, 1" % S_AFLAG)
            extras(tag, lambda: a("s_mov_b32 %s, 0" % S_AFLAG))

        def hstep(par, tag, first):
            POOLU = 2 * (256 - P0)
            if not first:
                a("L_top%s:" % tag)
                a("s_add_u32 s53, %s, 1" % S_STEP)
                a("s_cmp_lt_u32 s53, %s" % S_STAT)
                a("s_cbranch_scc1 L_nopub%s" % tag)
                a("s_cmp_lg_u32 %s, 0" % S_WAVE)
                a("s_cbranch_scc1 L_nopub%s" % tag)
                a("s_mov_b32 s54, 0x7ffe")
                a("s_cmp_eq_u32 %s, 0" % S_PEND)
                a("s_cbranch_scc1 L_pubw%s" % tag)
                a("s_waitcnt vmcnt(8)")
                a("v_readfirstlane_b32 %s, %s" % (S_RL, vr(V_A)))
                a("s_lshl_b32 s55, %s, 15" % S_HALF)
                a("s_add_u32 s54, %s, %d" % (S_RL, 2 * P0))
                a("s_min_u32 s54, s54, 0x7ffe")
                a("s_or_b32 s54, s54, s55")
                a("L_pubw%s:" % tag)
                a("s_lshl_b32 s55, s53, 16")
                a("s_or_b32 s54, s54, s55")
                a("v_mov_b32 %s, s54" % vr(T0))
                a("ds_write_b32 %s, %s" % (vr(V_IDA), vr(T0)))
                a("L_nopub%s:" % tag)
            a("s_waitcnt vmcnt(%d)" % (12 if first else 4))
            if not first:
                a("s_cmp_ge_u32 %s, 512" % S_UNIT[par])
                a("s_cbranch_scc1 L_loop_done")
                a("s_add_u32 s53, %s, 1" % S_STEP)
                a("s_cmp_lt_u32 s53, %s" % S_STAT)
                a("s_cbranch_scc0 L_dyn%s" % tag)
                a("s_add_u32 s54, %s, s53" % S_START)
                a("s_lshl_b32 s54, s54, 1")
                a("s_branch L_gotid%s" % tag)
                a("L_dyn%s:" % tag)
                a("s_mov_b32 %s, 0" % S_SPIN)
                a("L_idspin%s:" % tag)
                a("ds_read_b32 %s, %s" % (vr(V_ID), vr(V_IDA)))
                a("s_add_u32 %s, %s, 1" % (S_SPIN, S_SPIN))
                a("s_waitcnt lgkmcnt(0)")
                a("v_readfirstlane_b32 s54, %s" % vr(V_ID))
                a("s_cmp_gt_u32 %s, %d" % (S_SPIN, SPIN_LIMIT))
                a("s_cbranch_scc1 L_idok%s" % tag)
                a("s_lshr_b32 s55, s54, 16")
                a("s_cmp_lg_u32 s55, s53")
                a("s_cbranch_scc1 L_idspin%s" % tag)
                a("L_idok%s:" % tag)
                a("s_and_b32 s54, s54, 0xffff")
                a("L_gotid%s:" % tag)
                a("s_and_b32 %s, s54, 0x7fff" % S_UNIT[par ^ 1])
                a("s_lshl_b32 s55, %s, 14" % S_UNIT[par ^ 1])
                a("s_add_u32 %s, s55, %s" % (S_OFF[par ^ 1], S_WOFF))
                a("s_lshr_b32 s54, s54, 15")
                a("s_lshr_b32 s55, %s, 2" % S_WAVE)
                a("s_and_b32 s54, s54, s55")
                a("s_cmp_lg_u32 s54, 0")
                a("s_cselect_b32 %s, 0x7fff0000, %s" % (S_OFF[par ^ 1], S_OFF[par ^ 1]))
                a("s_mov_b32 %s, 0" % S_AFLAG)
                a("s_cmp_lt_u32 %s, %s" % (S_STEP, S_T3))
                a("s_cbranch_scc1 L_xdone%s" % tag)
                a("s_mov_b32 %s, 0" % S_HALF)
                a("s_cmp_eq_u32 %s, %s" % (S_STEP, S_T3))
                a("s_cbranch_scc1 L_grab%s" % tag)
                a("s_cmp_eq_u32 %s, 0" % S_PEND)
                a("s_cbranch_scc1 L_xdone%s" % tag)
                a("s_mov_b32 %s, 0" % S_PEND)
                a("s_cmp_ge_u32 %s, %d" % (S_RL, POOLU))
                a("s_cbranch_scc1 L_xdone%s" % tag)
                a("s_cmp_ge_u32 %s, %d" % (S_RL, max(0, POOLU - self.cfg["half"])))
                a("s_cselect_b32 %s, 1, 0" % S_HALF)
                a("L_grab%s:" % tag)
                a("s_sub_u32 s54, 2, %s" % S_HALF)
                a("v_mov_b32 %s, s54" % vr(T0))
                a("s_mov_b64 exec, 1")
                a("global_atomic_add %s, %s, %s, s[26:27] sc0 sc1" % (vr(V_A), vr(V_CTRA), vr(T0)))
                a("s_mov_b64 exec, -1")
                a("s_mov_b32 %s, 1" % S_PEND)
                a("s_mov_b32 %s, 1" % S_AFLAG)
                a("L_xdone%s:" % tag)
                self.dma_k(par ^ 1)
                a("s_cmp_ge_u32 %s, %s" % (S_OFF[par], S_NB))
                a("s_cbranch_scc1 L_idle%s" % tag)
            for j in range(4):
                a("ds_read_b128 %s, %s offset:%d" % (vr(VK + 4 * j, 4), vr(KA[j]), 8192 * par))
            a("s_waitcnt lgkmcnt(0)")
            a("s_barrier")
            for j in range(4):
                c = "0" if j == 0 else vr(VS, 4)
                a("v_mfma_f32_16x16x32_bf16 %s, %s, %s, %s" % (vr(VS, 4), vr(VK + 4 * j, 4), vr(VQ + 4 * j, 4), c))
            a("s_nop 7")

            def vwait(t):
                a("s_cmp_lg_u32 %s, 0" % S_AFLAG)
                a("s_cbranch_scc1 L_vw%s" % t)
                a("s_waitcnt vmcnt(4)")
                a("L_vw%s:" % t)
                a("s_waitcnt vmcnt(5)")
                self.dma_v(par ^ 1)

            def before_pv():
                if first:
                    a("s_waitcnt vmcnt(8)")
                else:
                    vwait(tag)
                for t in range(8):
                    a("ds_read_b64_tr_b16 %s, %s offset:%d" % (vr(VV + 2 * t, 2), vr(VA[t]), 8192 * par))

            self.softmax_pv(par, tag, lambda: None, before_pv=before_pv)
            if not first:
                a("L_next%s:" % tag)
            a("s_add_u32 %s, %s, 1" % (S_STEP, S_STEP))
            if not first:
                idle_blocks.append((par, tag, vwait))

        if self.cfg.get("depth") == "tight" and self.cfg.get("half") is not None:
            assert self.cfg.get("tags", 1) and not self.cfg.get("defer", 1)
            idle_blocks = []
            a("s_add_u32 s54, %s, %s" % (S_START, S_STEP))
            a("s_lshl_b32 %s, s54, 1" % S_UNIT[0])
            a("s_add_u32 %s, %s, 2" % (S_UNIT[1], S_UNIT[0]))
            a("s_mov_b32 %s, 0" % S_HALF)
            hstep(0, "p0", True)
            a("s_branch L_loop_odd")
            a("L_loop:")
            hstep(0, "0", False)
            a("L_loop_odd:")
            hstep(1, "1", False)
            if self.cfg.get("abuf") == 2:
                a("s_cmp_eq_u32 %s, 0" % S_BUF)
                a("s_cbranch_scc1 L_loop")
                a("s_mov_b32 %s, 0" % S_BUF)
                self.buffered_steps()
            a("s_branch L_loop")
            for par, tag, vwait in idle_blocks:
                a("L_idle%s:" % tag)
                a("s_barrier")
                vwait(tag + "i")
                a("s_branch L_next%s" % tag)
            return
        if self.cfg.get("depth") == "tight":
            if self.cfg.get("x_two"):
                a("s_branch L_loop")
            tstep(0, "p0", True)
            a("s_branch L_loop_odd")
            a("L_loop:")
            tstep(0, "0", False)
            a("L_loop_odd:")
            tstep(1, "1", False)
            if self.cfg.get("abuf") == 2:
                a("s_cmp_eq_u32 %s, 0" % S_BUF)
                a("s_cbranch_scc1 L_loop")
                a("s_mov_b32 %s, 0" % S_BUF)
                self.buffered_steps()
            a("s_branch L_loop")
            if self.cfg.get("defer", 1):
                exit_block(0, "0")
                exit_block(1, "1")
            return
        if self.cfg.get("depth") in ("dserial", "dpair"):
            sstep(0, "p0", 0)
            sstep(1, "p1", 1)
            a("L_loop:")
            sstep(0, "0", 2)
            sstep(1, "1", 2)
            a("s_branch L_loop")
            return
        step(0, "p0", True)
        a("s_branch L_loop_odd")
        a("L_loop:")
        step(0, "0", False)
        a("L_loop_odd:")
        step(1, "1", False)
        a("s_branch L_loop")

    def merge_pre(self):
        a = self.a
        self.allreduce_hi("v_add_f32", vr(V_L), "v105")
        a("s_mov_b64 exec, 0xf")
        a("ds_write_b64 v11, %s" % vr(V_M, 2))
        a("s_mov_b64 exec, -1")
        a("s_lshr_b32 s53, %s, 1" % S_WAVE)
        a("s_lshl_b32 s54, s53, 6")
        a("s_add_u32 s54, s54, %d" % L_ML)
        a("v_mov_b32 v64, s54")
        a("s_lshl_b32 s54, %s, 7" % S_SLOT)
        a("s_lshl_b32 s55, s53, 4")
        a("s_add_u32 s54, s54, s55")
        a("s_add_u32 s54, s54, %d" % ML_OFF)
        a("s_waitcnt lgkmcnt(0)")
        a("v_mov_b32 v11, s54")
        a("s_barrier")
        for k in range(4):
            a("ds_read_b128 %s, v64 offset:%d" % (vr(16 + 4 * k, 4), 16 * k))
        a("s_waitcnt lgkmcnt(0)")
        a("v_max3_f32 v65, v16, v18, v20")
        a("v_max3_f32 v65, v65, v22, v24")
        a("v_max3_f32 v65, v65, v26, v28")
        a("v_max_f32 v65, v65, v30")
        a("v_mul_f32 v68, %s, v65" % S_CS)
        for ww in range(8):
            a("v_fma_f32 %s, %s, %s, -v68" % (vr(16 + 2 * ww), vr(16 + 2 * ww), S_CS))
        for ww in range(8):
            a("v_exp_f32 %s, %s" % (vr(16 + 2 * ww), vr(16 + 2 * ww)))
        a("v_mov_b32 v70, %s" % S_TAG)
        a("v_mul_f32 v69, v16, v17")
        for ww in range(1, 8):
            a("v_fmac_f32 v69, %s, %s" % (vr(16 + 2 * ww), vr(17 + 2 * ww)))

    def buffered_steps(self):
        a = self.a
        for j in range(2):
            for jj in range(4):
                c = "0" if jj == 0 else vr(VS, 4)
                a("v_mfma_f32_16x16x32_bf16 %s, %s, %s, %s" % (vr(VS, 4), ar(32 * j + 4 * jj, 4), vr(VQ + 4 * jj, 4), c))
            a("s_nop 7")
            self.softmax_pv(0, "b%d" % j, lambda: None, vsrc=lambda t, j=j: ar(32 * j + 16 + 2 * t, 2))

    def softmax_pv(self, par, tag, issue_v, vsrc=None, before_pv=None):
        a = self.a
        T0, T1 = 105, 106
        if self.cfg.get("x_nocomp"):
            if before_pv is not None:
                before_pv()
            a("s_waitcnt lgkmcnt(0)")
            issue_v()
            return
        for r in (0, 2):
            a("v_cvt_pk_bf16_f32 %s, %s, %s" % (vr(T0), vr(VS + r), vr(VS + r + 1)))
            a("v_lshlrev_b32 %s, 16, %s" % (vr(VS + r), vr(T0)))
            a("v_and_b32 %s, 0xffff0000, %s" % (vr(VS + r + 1), vr(T0)))
            a("v_mul_f32 %s, %s, %s" % (vr(VS + r), S_SC, vr(VS + r)))
            a("v_mul_f32 %s, %s, %s" % (vr(VS + r + 1), S_SC, vr(VS + r + 1)))
            a("v_cvt_pk_bf16_f32 %s, %s, %s" % (vr(T0), vr(VS + r), vr(VS + r + 1)))
            a("v_lshlrev_b32 %s, 16, %s" % (vr(VS + r), vr(T0)))
            a("v_and_b32 %s, 0xffff0000, %s" % (vr(VS + r + 1), vr(T0)))
        a("v_max3_f32 %s, %s, %s, %s" % (vr(T0), vr(VS), vr(VS + 1), vr(VS + 2)))
        a("v_max_f32 %s, %s, %s" % (vr(T0), vr(T0), vr(VS + 3)))
        self.allreduce_hi("v_max_f32", vr(T0), vr(T1))
        a("v_cmp_gt_f32 vcc, %s, %s" % (vr(T0), vr(V_M)))
        a("s_cbranch_vccz L_nors%s" % tag)
        a("v_max_f32 %s, %s, %s" % (vr(T0), vr(T0), vr(V_M)))
        a("v_sub_f32 %s, %s, %s" % (vr(T1), vr(V_M), vr(T0)))
        a("v_mul_f32 %s, %s, %s" % (vr(T1), S_CS, vr(T1)))
        a("v_exp_f32 %s, %s" % (vr(T1), vr(T1)))
        a("v_mov_b32 %s, %s" % (vr(V_M), vr(T0)))
        a("v_mul_f32 %s, %s, %s" % (vr(V_MC), S_CS, vr(T0)))
        a("v_mul_f32 %s, %s, %s" % (vr(V_L), vr(V_L), vr(T1)))
        for k in range(32):
            a("v_mul_f32 %s, %s, %s" % (vr(VO + k), vr(VO + k), vr(T1)))
        a("L_nors%s:" % tag)
        for r in range(4):
            a("v_fma_f32 %s, %s, %s, -%s" % (vr(VS + r), vr(VS + r), S_CS, vr(V_MC)))
        for r in range(4):
            a("v_exp_f32 %s, %s" % (vr(VS + r), vr(VS + r)))
        a("v_add_f32 %s, %s, %s" % (vr(T0), vr(VS), vr(VS + 1)))
        a("v_add_f32 %s, %s, %s" % (vr(T1), vr(VS + 2), vr(VS + 3)))
        a("v_cvt_pk_bf16_f32 %s, %s, %s" % (vr(VP), vr(VS), vr(VS + 1)))
        a("v_cvt_pk_bf16_f32 %s, %s, %s" % (vr(VP + 1), vr(VS + 2), vr(VS + 3)))
        a("v_add_f32 %s, %s, %s" % (vr(T0), vr(T0), vr(T1)))
        a("v_add_f32 %s, %s, %s" % (vr(V_L), vr(V_L), vr(T0)))
        if before_pv is not None:
            before_pv()
        a("s_waitcnt lgkmcnt(0)")
        issue_v()
        for t in range(8):
            src = vr(VV + 2 * t, 2) if vsrc is None else vsrc(t)
            a("v_mfma_f32_16x16x16_bf16 %s, %s, %s, %s" % (vr(VO + 4 * t, 4), src, vr(VP, 2), vr(VO + 4 * t, 4)))

    def tail(self):
        a = self.a
        cfg = self.cfg
        A_O0, A_O1, A_MLA, A_MLB, A_OCW, A_OCR = 4, 5, 6, 7, 8, 9
        A_H2P, A_H2G, A_H3P, A_H3G, A_XNR, A_GW, A_GR, A_H4P, A_OUT, A_H4G, A_LN = 112, 113, 117, 118, 119, 120, 121, 122, 123, 100, 111
        M_N2, M_FF, M_R1, M_R2, M_R3 = "s[88:89]", "s[94:95]", "s[96:97]", "s[98:99]", "s[100:101]"

        a("v_lshrrev_b32 v1, 3, v0")
        a("v_and_b32 v2, 7, v0")
        a("v_lshrrev_b32 v10, 4, v0")
        a("v_and_b32 v11, 15, v0")
        a("v_and_b32 v12, 1, v0")
        a("s_lshr_b32 s53, %s, 2" % S_WAVE)
        a("s_lshl_b32 s53, s53, 3")
        a("s_lshr_b32 s54, %s, 2" % S_I)
        a("s_add_u32 s53, s53, s54")
        a("s_lshl_b32 s53, s53, 4")
        a("s_and_b32 s54, %s, 3" % S_I)
        a("s_lshl_b32 s55, s53, 11")
        a("s_lshl_b32 s56, s54, 9")
        a("s_add_u32 s55, s55, s56")
        a("s_and_b32 s56, %s, 3" % S_WAVE)
        a("s_lshl_b32 s56, s56, 7")
        a("s_add_u32 s55, s55, s56")
        a("s_add_u32 s55, s55, %d" % H1_OFF)
        a("v_lshlrev_b32 v13, 11, v1")
        a("v_lshl_add_u32 v13, v2, 4, v13")
        a("v_add_u32 %s, s55, v13" % vr(A_O0))
        a("v_add_u32 %s, 16384, %s" % (vr(A_O1), vr(A_O0)))
        a("s_lshl_b32 s55, s53, 7")
        a("s_lshl_b32 s56, s54, 4")
        a("s_add_u32 s55, s55, s56")
        a("s_add_u32 s55, s55, %d" % ML_OFF)
        a("v_lshl_add_u32 %s, v11, 7, s55" % vr(A_MLA))
        a("v_lshl_add_u32 %s, v1, 7, s55" % vr(A_MLB))
        a("v_lshl_add_u32 v13, v2, 2, v10")
        a("s_lshl_b32 s53, %s, 6" % S_WAVE)
        a("s_add_u32 s53, s53, %d" % L_OC)
        a("v_lshl_add_u32 %s, v13, 1, s53" % vr(A_OCW))
        a("v_lshlrev_b32 v13, 4, v10")
        a("v_lshl_add_u32 %s, v12, 8, v13" % vr(A_OCR))
        a("v_add_u32 %s, %d, %s" % (vr(A_OCR), L_OC, vr(A_OCR)))
        a("v_lshl_add_u32 %s, v12, 10, v13" % vr(A_XNR))
        a("v_add_u32 %s, %d, %s" % (vr(A_XNR), L_XN, vr(A_XNR)))
        a("v_lshl_add_u32 %s, v12, 7, v13" % vr(A_GR))
        a("v_add_u32 %s, %d, %s" % (vr(A_GR), L_G, vr(A_GR)))
        a("v_lshlrev_b32 v13, 3, v0")
        a("s_lshl_b32 s53, %s, 12" % S_I)
        a("s_lshl_b32 s54, %s, 9" % S_WAVE)
        a("s_add_u32 s54, s54, s53")
        a("s_add_u32 s54, s54, %d" % H2_OFF)
        a("v_add_u32 %s, s54, v13" % vr(A_H2P))
        a("s_and_b32 s54, %s, 3" % S_WAVE)
        a("s_lshl_b32 s54, s54, 10")
        a("s_add_u32 s54, s54, s53")
        a("s_add_u32 s54, s54, %d" % H4_OFF)
        a("v_add_u32 %s, s54, v13" % vr(A_H4P))
        a("v_lshlrev_b32 v13, 12, v1")
        a("v_lshl_add_u32 v13, v2, 4, v13")
        a("s_lshl_b32 s53, %s, 7" % S_I)
        a("s_add_u32 s54, s53, %d" % H2_OFF)
        a("v_add_u32 %s, s54, v13" % vr(A_H2G))
        a("s_add_u32 s54, s53, %d" % H4_OFF)
        a("v_add_u32 %s, s54, v13" % vr(A_H4G))
        for jj in range(1, 4):
            a("v_add_u32 %s, %d, %s" % (vr(A_H2G + jj), 32768 * jj, vr(A_H2G)))
        for jj in range(1, 3):
            a("v_add_u32 %s, %d, %s" % (vr(A_H4G + jj), 32768 * jj, vr(A_H4G)))
        a("v_and_b32 v13, 3, v1")
        a("v_sub_u32 v13, v13, v1")
        a("v_lshlrev_b32 v13, 12, v13")
        a("v_add_u32 v13, v13, %s" % vr(A_H4G))
        a("v_add_u32 %s, %d, v13" % (vr(A_H4G + 3), 32768 * 3))
        a("v_bfe_u32 v1, v0, 4, 1")
        a("v_and_b32 v2, 7, v0")
        a("v_lshrrev_b32 v13, 5, v0")
        a("v_lshl_add_u32 v2, v2, 1, v13")
        a("v_lshlrev_b32 v13, 2, v2")
        a("v_lshl_add_u32 v13, v1, 6, v13")
        a("s_add_u32 s54, s53, %d" % H3_OFF)
        a("v_add_u32 %s, s54, v13" % vr(A_H3P))
        a("s_lshl_b32 s53, %s, 4" % S_I)
        a("v_add_u32 v2, s53, v2")
        a("v_lshlrev_b32 v2, 1, v2")
        a("v_lshl_add_u32 %s, v1, 10, v2" % vr(A_OUT))
        a("v_lshlrev_b32 %s, 4, v0" % vr(A_H3G))
        a("v_add_u32 %s, %d, %s" % (vr(A_H3G), H3_OFF, vr(A_H3G)))
        a("v_and_b32 v13, 1, v10")
        a("v_lshlrev_b32 v13, 7, v13")
        a("v_lshl_add_u32 v13, v11, 1, v13")
        a("s_lshl_b32 s53, %s, 5" % S_WAVE)
        a("s_add_u32 s53, s53, %d" % L_G)
        a("v_add_u32 %s, s53, v13" % vr(A_GW))
        self.ln_addr(vr(A_LN), "v13")
        self.mask64(94, 0x00ff00ff00ff00ff)
        a("v_lshlrev_b32 %s, 16, %s" % (vr(V_XRES), vr(V_XRES)))
        a("v_lshlrev_b32 %s, 16, %s" % (vr(V_B2), vr(V_B2)))
        a("v_lshlrev_b32 %s, 16, %s" % (vr(V_B1), vr(V_B1)))

        if cfg.get("tags", 1):
            a("v_and_b32 v11, 31, v0")
            a("v_lshlrev_b32 v11, 2, v11")
            a("v_add_u32 v11, %d, v11" % MODE_OFF)
            a("s_mov_b32 %s, 0" % S_SPIN)
            a("s_and_b32 s54, %s, 1" % S_WAVE)
            a("s_cmp_eq_u32 s54, 0")
            a("s_cbranch_scc1 L_flagw")
            a("s_waitcnt vmcnt(1)")
            a("L_flagw:")
            a("s_waitcnt vmcnt(2)")
            a("s_and_b32 s53, %s, 0xfffffff0" % S_TAG)
            a("L_flag:")
            a("v_and_b32 v10, 0xfffffff0, %s" % vr(V_FLAG))
            a("v_cmp_ne_u32 vcc, s53, v10")
            a("s_cbranch_vccz L_flag_ok")
            a("global_load_dword %s, v11, %s sc1" % (vr(V_FLAG), S_WS))
            a("s_add_u32 %s, %s, 1" % (S_SPIN, S_SPIN))
            a("s_cmp_gt_u32 %s, %d" % (S_SPIN, SPIN_LIMIT))
            a("s_cbranch_scc1 L_flag_ok")
            a("s_waitcnt vmcnt(0)")
            a("s_branch L_flag")
            a("L_flag_ok:")
            a("v_and_b32 v10, 15, %s" % vr(V_FLAG))
            a("v_cmp_ne_u32 vcc, %s, v10" % S_XCC)
            a("s_cmp_lg_u64 vcc, 0")
            a("s_cselect_b32 %s, 1, 0" % S_MODE)
        else:
            a("v_lshlrev_b32 v11, 2, v0")
            a("s_mov_b32 %s, 0" % S_SPIN)
            if cfg.get("dyn"):
                a("s_and_b32 s54, %s, 1" % S_WAVE)
                a("s_cmp_eq_u32 s54, 0")
                a("s_cbranch_scc1 L_flagw")
                a("s_waitcnt vmcnt(1)")
                a("L_flagw:")
                a("s_waitcnt vmcnt(2)")
            a("s_mov_b32 s53, 0x80808080")
            a("L_flag:")
            a("v_and_b32 v10, s53, %s" % vr(V_FLAG))
            a("v_cmp_ne_u32 vcc, s53, v10")
            a("s_cbranch_vccz L_flag_ok")
            a("global_load_dword %s, v11, s[26:27] sc1" % vr(V_FLAG))
            a("s_add_u32 %s, %s, 1" % (S_SPIN, S_SPIN))
            a("s_cmp_gt_u32 %s, %d" % (S_SPIN, SPIN_LIMIT))
            a("s_cbranch_scc1 L_flag_ok")
            a("s_waitcnt vmcnt(0)")
            a("s_branch L_flag")
            a("L_flag_ok:")
            a("v_and_b32 v10, 15, %s" % vr(V_FLAG))
            a("v_cmp_ne_u32 vcc, %s, v10" % S_XCC)
            a("s_mov_b32 s54, 0x55555555")
            a("s_and_b32 s55, vcc_lo, s54")
            a("s_and_b32 s54, vcc_hi, s54")
            a("s_or_b32 s54, s54, s55")
            a("s_cmp_lg_u32 s54, 0")
            a("s_cselect_b32 %s, 1, 0" % S_MODE)
        if cfg.get("force_sc1"):
            a("s_mov_b32 %s, 1" % S_MODE)
        if cfg.get("x_modeprobe"):
            a("s_cmp_eq_u32 %s, 0" % S_MODE)
            a("s_cbranch_scc1 L_probe_done")
            for k in range(6):
                a("s_sleep 127")
            a("L_probe_done:")

        self.stamp2(4)
        if cfg.get("warm", 1):
            a("s_cmp_ge_u32 %s, 4" % S_WAVE)
            a("s_cbranch_scc1 L_nowarm")
            for jj in range(4):
                a("global_load_dwordx4 %s, %s, %s offset:%d sc1" % (vr(80 + 4 * jj, 4), vr(A_H3G), S_WS, 1024 * jj))
            a("s_cmp_lg_u32 %s, 0" % S_WAVE)
            a("s_cbranch_scc1 L_nowarm")
            for jj in range(4):
                a("global_load_dwordx4 %s, %s, %s sc1" % (vr(48 + 4 * jj, 4), vr(A_H2G + jj), S_WS))
                a("global_load_dwordx4 %s, %s, %s sc1" % (vr(64 + 4 * jj, 4), vr(A_H4G + jj), S_WS))
            a("L_nowarm:")

        def h1_issue():
            a("global_load_dwordx4 v[16:19], %s, %s sc1" % (vr(A_O0), S_WS))
            a("global_load_dwordx4 v[20:23], %s, %s sc1" % (vr(A_O1), S_WS))
            if cfg.get("tags", 1):
                a("global_load_dwordx3 v[24:26], %s, %s sc1" % (vr(A_MLA), S_WS))
                a("global_load_dwordx3 v[28:30], %s, %s sc1" % (vr(A_MLB), S_WS))
                a("global_load_dwordx3 v[32:34], %s, %s offset:1024 sc1" % (vr(A_MLB), S_WS))
            else:
                a("global_load_dwordx2 v[24:25], %s, %s sc1" % (vr(A_MLA), S_WS))
                a("global_load_dwordx2 v[28:29], %s, %s sc1" % (vr(A_MLB), S_WS))
                a("global_load_dwordx2 v[32:33], %s, %s offset:1024 sc1" % (vr(A_MLB), S_WS))

        if cfg.get("tags", 1):
            self.poll("L_h1", h1_issue, range(16, 24), 36, full=(26, 30, 34), backoff=cfg.get("backoff"))
        else:
            self.poll("L_h1", h1_issue, list(range(16, 26)) + [28, 29, 32, 33], 36)
        self.stamp(10)
        a("v_mov_b32 v36, v24")
        for c in (8, 4, 2, 1):
            self.dpp("v_max_f32", "v36", "row_ror:%d" % c)
        a("v_sub_f32 v24, v24, v36")
        a("v_sub_f32 v28, v28, v36")
        a("v_sub_f32 v32, v32, v36")
        a("v_exp_f32 v24, v24")
        a("v_exp_f32 v28, v28")
        a("v_exp_f32 v32, v32")
        a("v_mul_f32 v24, v24, v25")
        for k in range(4):
            a("v_mul_f32 %s, v28, %s" % (vr(16 + k), vr(16 + k)))
            if k < 3:
                self.dpp("v_add_f32", "v24", "row_ror:%d" % (8 >> k))
        self.dpp("v_add_f32", "v24", "row_ror:1")
        for k in range(4):
            a("v_fmac_f32 %s, v32, %s" % (vr(16 + k), vr(20 + k)))
        a("v_rcp_f32 v24, v24")
        self.reduce8(16, None)
        a("v_mul_f32 v16, v16, v24")
        a("v_cvt_pk_bf16_f32 v16, v16, v16")
        a("ds_write_b16 %s, v16" % vr(A_OCW))
        a("s_waitcnt lgkmcnt(0)")
        self.stamp2(5)
        a("s_barrier")
        self.stamp2(6)
        for j in range(4):
            a("ds_read_b128 %s, %s offset:%d" % (vr(16 + 4 * j, 4), vr(A_OCR), 64 * j))
        for j in range(4):
            a("s_waitcnt lgkmcnt(%d)" % (3 - j))
            for t in range(4):
                c = "0" if j == 0 else vr(32 + 4 * t, 4)
                a("v_mfma_f32_16x16x32_bf16 %s, %s, %s, %s" % (vr(32 + 4 * t, 4), vr(16 + 4 * j, 4), ar(16 * j + 4 * t, 4), c))
        for t in range(1, 4):
            for r in range(2):
                a("v_mov_b32_dpp %s, %s quad_perm:[0,1,2,3] row_mask:0x%x bank_mask:0xf" % (vr(32 + r), vr(32 + 4 * t + r), 1 << t))
        self.tagged("v32", "v32")
        self.tagged("v33", "v33")
        self.pub_store("h2", lambda fl: a("global_store_dwordx2 %s, v[32:33], %s%s" % (vr(A_H2P), S_WS, fl)))
        self.stamp(11)

        def slice_sum():
            for k in range(4):
                a("v_add_f32 %s, %s, %s" % (vr(16 + k), vr(16 + k), vr(20 + k)))
                a("v_add_f32 %s, %s, %s" % (vr(24 + k), vr(24 + k), vr(28 + k)))
            for k in range(4):
                a("v_add_f32 %s, %s, %s" % (vr(16 + k), vr(16 + k), vr(24 + k)))
            self.reduce8(16, None)
            self.bf16r("v16", "v16")

        a("s_cmp_lg_u32 %s, 0" % S_WAVE)
        a("s_cbranch_scc1 L_h2_skip")

        def h2_issue():
            for jj in range(4):
                a("global_load_dwordx4 %s, %s, %s sc1" % (vr(16 + 4 * jj, 4), vr(A_H2G + jj), S_WS))

        self.poll("L_h2", h2_issue, range(16, 32), 32)
        slice_sum()
        a("v_add_f32 v16, v16, %s" % vr(V_XRES))
        self.bf16r(vr(V_XRES), "v16")
        a("s_mov_b64 exec, %s" % M_FF)
        self.tagged("v17", vr(V_XRES))
        self.pub_store("h3", lambda fl: a("global_store_dword %s, v17, %s%s" % (vr(A_H3P), S_WS, fl)))
        a("s_mov_b64 exec, -1")
        self.stamp(12)
        a("L_h2_skip:")
        a("s_cmp_ge_u32 %s, 28" % S_I)
        a("s_cbranch_scc1 L_noffn")
        a("s_barrier")
        a("s_cmp_ge_u32 %s, 4" % S_WAVE)
        a("s_cbranch_scc1 L_ffn2")

        def h3_issue():
            for jj in range(4):
                a("global_load_dwordx4 %s, %s, %s offset:%d sc1" % (vr(80 + 4 * jj, 4), vr(A_H3G), S_WS, 1024 * jj))

        self.poll("L_h3", h3_issue, range(80, 96), 32)
        self.stamp(13)
        self.layernorm(80, 104, vr(A_LN))
        a("s_waitcnt lgkmcnt(0)")
        for k in range(16):
            a("ds_read_b128 %s, %s offset:%d" % (vr(16 + 4 * k, 4), vr(A_XNR), 64 * k))
        for k in range(16):
            if k % 2 == 0:
                a("s_waitcnt lgkmcnt(%d)" % (14 - k))
            c = "0" if k == 0 else "v[96:99]"
            a("v_mfma_f32_16x16x32_bf16 v[96:99], %s, %s, %s" % (vr(16 + 4 * k, 4), ar(64 + 4 * k, 4), c))
        a("v_mov_b32_dpp v96, v97 quad_perm:[0,1,2,3] row_mask:0xa bank_mask:0xf")
        self.bf16r("v96", "v96")
        a("v_add_f32 v96, v96, %s" % vr(V_B1))
        self.bf16r("v96", "v96")
        k0 = -2.0 * math.log2(math.e) * math.sqrt(2.0 / math.pi)
        a("v_mul_f32 v97, v96, v96")
        a("v_mul_f32 v97, 0x%08x, v97" % f2u(0.044715 * k0))
        a("v_add_f32 v97, 0x%08x, v97" % f2u(k0))
        a("v_mul_f32 v97, v97, v96")
        a("v_exp_f32 v97, v97")
        a("v_add_f32 v97, 1.0, v97")
        a("v_rcp_f32 v97, v97")
        a("v_mul_f32 v96, v96, v97")
        a("v_cvt_pk_bf16_f32 v96, v96, v96")
        a("ds_write_b16 %s, v96" % vr(A_GW))
        a("s_waitcnt lgkmcnt(0)")
        self.stamp(14)
        a("s_barrier")
        a("s_cmp_eq_u32 %s, 0" % S_WAVE)
        a("s_cbranch_scc1 L_final")
        a("s_branch L_finish")

        a("L_ffn2:")
        a("s_barrier")
        a("ds_read_b128 v[16:19], %s" % vr(A_GR))
        a("ds_read_b128 v[20:23], %s offset:64" % vr(A_GR))
        for kk in range(2):
            a("s_waitcnt lgkmcnt(%d)" % (1 - kk))
            for t in range(8):
                q = 2 * kk + (t >> 2)
                c = "0" if kk == 0 else vr(32 + 4 * t, 4)
                a("v_mfma_f32_16x16x32_bf16 %s, %s, %s, %s" % (vr(32 + 4 * t, 4), vr(16 + 4 * kk, 4), ar(64 + 16 * q + 4 * (t & 3), 4), c))
        for u in range(2):
            for t in range(1, 4):
                for r in range(2):
                    a("v_mov_b32_dpp %s, %s quad_perm:[0,1,2,3] row_mask:0x%x bank_mask:0xf" % (vr(32 + 16 * u + r), vr(32 + 16 * u + 4 * t + r), 1 << t))

        for u in range(2):
            self.tagged(vr(32 + 16 * u), vr(32 + 16 * u))
            self.tagged(vr(33 + 16 * u), vr(33 + 16 * u))

        def h4_pub(fl):
            for u in range(2):
                a("global_store_dwordx2 %s, %s, %s offset:%d%s" % (vr(A_H4P), vr(32 + 16 * u, 2), S_WS, 512 * u, fl))

        self.pub_store("h4", h4_pub)
        a("s_branch L_finish")

        a("L_noffn:")
        a("s_cmp_lg_u32 %s, 0" % S_WAVE)
        a("s_cbranch_scc1 L_finish")

        a("L_final:")

        def h4_issue():
            for jj in range(4):
                a("global_load_dwordx4 %s, %s, %s sc1" % (vr(16 + 4 * jj, 4), vr(A_H4G + jj), S_WS))

        self.poll("L_h4", h4_issue, range(16, 32), 32)
        self.stamp(15)
        a("s_mov_b32 exec_lo, 0")
        a("s_mov_b32 exec_hi, -1")
        for k in range(4):
            a("v_mov_b32 %s, 0" % vr(28 + k))
        a("s_mov_b64 exec, -1")
        slice_sum()
        a("v_add_f32 v16, v16, %s" % vr(V_B2))
        self.bf16r("v16", "v16")
        a("v_add_f32 v16, v16, %s" % vr(V_XRES))
        a("v_cvt_pk_bf16_f32 v16, v16, v16")
        a("s_mov_b64 exec, %s" % M_FF)
        a("global_store_short %s, v16, s[24:25]" % vr(A_OUT))
        a("s_mov_b64 exec, -1")
        a("s_cmp_lg_u32 s2, 0")
        a("s_cbranch_scc1 L_finish")
        a("v_mov_b32 v10, %d" % EPOCH_OFF)
        a("v_mov_b32 v11, %s" % S_EPOCH)
        a("s_mov_b64 exec, 1")
        a("global_store_dword v10, v11, %s sc1" % S_WS)
        a("s_mov_b64 exec, -1")

    def build(self):
        a = self.a
        cfg = self.cfg
        NCH_T, NCH_R = cfg.get("nch_tail", 25), cfg.get("nch_reg", 33)
        assert 2 * NCH_T + 14 * NCH_R == 512

        a("s_cmp_ge_u32 s2, 256")
        a("s_cbranch_scc1 L_end")
        if cfg.get("x_perm"):
            a("s_lshr_b32 s3, s2, 3")
            a("s_xor_b32 s2, s2, s3")
            a("s_xor_b32 s2, s2, %d" % cfg["x_perm"])
            a("s_and_b32 s2, s2, 255")
        a("s_load_dwordx8 s[4:11], s[0:1], 0")
        a("s_load_dwordx8 s[12:19], s[0:1], 32")
        a("s_load_dwordx8 s[20:27], s[0:1], 64")
        a("s_load_dwordx2 s[28:29], s[0:1], 96")
        if cfg.get("lite"):
            a("s_memrealtime s[64:65]")
        if cfg.get("diag"):
            a("s_memrealtime s[64:65]")
            for k in range(66, 80):
                a("s_mov_b32 s%d, 0" % k)
        a("v_lshrrev_b32 v1, 6, v0")
        a("v_mov_b32 %s, v0" % V_TID)
        a("v_and_b32 v0, 63, v0")
        a("v_readfirstlane_b32 %s, v1" % S_WAVE)
        a("s_getreg_b32 %s, hwreg(HW_REG_XCC_ID, 0, 4)" % S_XCC)
        a("s_lshr_b32 %s, s2, 3" % S_I)
        a("s_and_b32 %s, s2, 7" % S_TAIL)
        if cfg.get("spread"):
            a("s_and_b32 %s, %s, 15" % (S_G, S_I))
            a("s_lshr_b32 %s, s2, 7" % S_SPLIT)
            a("s_lshl_b32 %s, %s, 3" % (S_SPLIT, S_SPLIT))
            a("s_add_u32 %s, %s, %s" % (S_SPLIT, S_SPLIT, S_TAIL))
        else:
            a("s_lshr_b32 %s, s2, 4" % S_G)
            a("s_and_b32 %s, s2, 15" % S_SPLIT)
        a("s_lshl_b32 %s, %s, 4" % (S_SLOT, S_G))
        a("s_add_u32 %s, %s, %s" % (S_SLOT, S_SLOT, S_SPLIT))
        a("s_lshl_b32 %s, %s, 5" % (S_C, S_TAIL))
        a("s_add_u32 %s, %s, %s" % (S_C, S_C, S_I))
        a("s_mov_b32 %s, 0x%08x" % (S_CS, f2u(CSCALE)))
        a("s_lshl_b32 %s, %s, 14" % (S_RING, S_WAVE))
        dyn = cfg.get("dyn")
        if not dyn:
            a("s_mul_i32 s53, %s, %d" % (S_SPLIT, NCH_R))
            a("s_cmp_gt_u32 %s, 0" % S_SPLIT)
            a("s_cselect_b32 s54, %d, 0" % (NCH_R - NCH_T))
            a("s_sub_u32 s53, s53, s54")
            a("s_cmp_gt_u32 %s, 8" % S_SPLIT)
            a("s_cselect_b32 s54, %d, 0" % (NCH_R - NCH_T))
            a("s_sub_u32 s53, s53, s54")
            a("s_lshl_b32 s53, s53, 14")
            a("s_lshl_b32 s54, %s, 23" % S_G)
            a("s_add_u32 s53, s53, s54")
            a("s_cmp_eq_u32 %s, 0" % S_TAIL)
            a("s_cselect_b32 s55, %d, %d" % (NCH_T, NCH_R))
            a("s_add_u32 %s, s55, 1" % S_CNT)
            a("s_lshr_b32 %s, %s, 1" % (S_CNT, S_CNT))
            a("s_sub_u32 %s, %s, 3" % (S_FSTEP, S_CNT))
            a("s_cmp_eq_u32 %s, 0" % S_WAVE)
            a("s_cselect_b32 %s, %s, -1" % (S_FSTEP, S_FSTEP))
            a("s_lshl_b32 s55, s55, 14")
            a("s_mov_b32 %s, s55" % S_NB)
            a("s_lshl_b32 %s, %s, 12" % (S_OFF[0], S_WAVE))
            a("s_add_u32 %s, %s, 32768" % (S_OFF[1], S_OFF[0]))
        else:
            SR, ST = dyn
            SP = cfg.get("sp", SR)
            P0 = (10 * SR + 4 * SP + 2 * ST) if cfg.get("spread") else (14 * SR + 2 * ST)
            assert P0 <= 256
            if cfg.get("spread"):
                a("s_cmp_ge_u32 %s, 7" % S_G)
                a("s_cselect_b32 s54, 7, 0")
                a("s_sub_u32 s55, %s, s54" % S_G)
                a("s_cmp_ge_u32 %s, 14" % S_G)
                a("s_cselect_b32 s54, 7, 0")
                a("s_sub_u32 s55, s55, s54")
                a("s_lshl_b32 s56, 15, s55")
                a("s_sub_u32 s54, 7, s55")
                a("s_lshr_b32 s54, 15, s54")
                a("s_or_b32 s56, s56, s54")
                a("s_and_b32 s56, s56, 0x7f")
                a("s_lshl_b32 s56, s56, 1")
                a("s_min_u32 s54, %s, 8" % S_SPLIT)
                a("s_lshl_b32 s54, 1, s54")
                a("s_sub_u32 s54, s54, 1")
                a("s_and_b32 s54, s56, s54")
                a("s_bcnt1_i32_b32 s57, s54")
                a("s_lshr_b32 s56, s56, %s" % S_SPLIT)
                a("s_and_b32 s58, s56, 1")
                if cfg.get("tailq"):
                    assert SP == SR
                    a("s_mov_b32 s58, 0")
                a("s_lshl_b32 %s, %s, 2" % (S_C, S_G))
                a("s_add_u32 %s, %s, s57" % (S_C, S_C))
            a("s_mul_i32 %s, %s, %d" % (S_START, S_SPLIT, SR))
            a("s_cmp_gt_u32 %s, 0" % S_SPLIT)
            a("s_cselect_b32 s54, %d, 0" % (SR - ST))
            a("s_sub_u32 %s, %s, s54" % (S_START, S_START))
            a("s_cmp_gt_u32 %s, 8" % S_SPLIT)
            a("s_cselect_b32 s54, %d, 0" % (SR - ST))
            a("s_sub_u32 %s, %s, s54" % (S_START, S_START))
            a("s_cmp_eq_u32 %s, 0" % S_TAIL)
            a("s_cselect_b32 %s, %d, %d" % (S_STAT, ST, SR))
            if cfg.get("spread"):
                a("s_mul_i32 s54, s57, %d" % (SR - SP))
                a("s_sub_u32 %s, %s, s54" % (S_START, S_START))
                a("s_cmp_lg_u32 s58, 0")
                a("s_cselect_b32 %s, %d, %s" % (S_STAT, SP, S_STAT))
            a("s_lshl_b32 s53, %s, 23" % S_G)
            a("s_mov_b32 s55, 0x800000")
            a("s_mov_b32 %s, s55" % S_NB)
            a("s_lshl_b32 %s, %s, 12" % (S_WOFF, S_WAVE))
            a("s_lshl_b32 %s, %s, 15" % (S_OFF[0], S_START))
            a("s_add_u32 %s, %s, %s" % (S_OFF[0], S_OFF[0], S_WOFF))
            a("s_add_u32 %s, %s, 32768" % (S_OFF[1], S_OFF[0]))
            a("s_mov_b32 %s, 0" % S_STEP)
            a("s_mov_b32 %s, 0" % S_BUF)
            a("s_mov_b32 %s, 0" % S_AFLAG)
            a("s_cmp_eq_u32 %s, 0" % S_WAVE)
            a("s_cmp_eq_u32 %s, 0" % S_TAIL)
            a("s_cselect_b32 s54, 2, %d" % (4 if cfg.get("abuf", 1) else 2))
            a("s_cmp_eq_u32 %s, 0" % S_WAVE)
            a("s_cselect_b32 %s, s54, -1" % S_T1)
            a("s_sub_u32 s54, %s, 3" % S_STAT)
            a("s_cmp_eq_u32 %s, 0" % S_WAVE)
            a("s_cselect_b32 %s, s54, -1" % S_T2)
            a("s_sub_u32 s54, %s, 2" % S_STAT)
            a("s_cmp_eq_u32 %s, 0" % S_WAVE)
            a("s_cselect_b32 %s, s54, 0x7fff" % S_T3)
            if cfg.get("tailstatic"):
                a("s_cmp_eq_u32 %s, 0" % S_TAIL)
                a("s_cselect_b32 %s, 0x7fff, %s" % (S_T3, S_T3))
                a("s_cselect_b32 %s, -1, %s" % (S_T2, S_T2))
            if cfg.get("spread") and cfg.get("prodstatic"):
                a("s_cmp_lg_u32 s58, 0")
                a("s_cselect_b32 %s, 0x7fff, %s" % (S_T3, S_T3))
            a("s_cmp_eq_u32 %s, 0" % S_TAIL)
            a("s_mov_b32 %s, -1" % S_T4)
            if cfg.get("spread"):
                assert cfg.get("tags", 1) and cfg.get("depth") == "tight"
                a("s_mov_b32 %s, s58" % S_PROD)
            if cfg.get("tags", 1):
                a("s_mov_b32 %s, -1" % S_T1)
                if not cfg.get("dpeek"):
                    a("s_mov_b32 %s, -1" % S_T2)
        a("s_mov_b32 %s, 0x%08x" % (S_SC, f2u(SCALE)))
        a("v_lshrrev_b32 v1, 4, v0")
        a("v_and_b32 v2, 15, v0")
        a("v_xor_b32 v10, v1, v2")
        a("v_lshlrev_b32 v10, 4, v10")
        a("v_lshl_add_u32 %s, v1, 8, v10" % vr(KD[0]))
        for j in range(1, 4):
            a("v_xor_b32 %s, %d, %s" % (vr(KD[j]), j << 6, vr(KD[0])))
        a("v_lshlrev_b32 v10, 1, v1")
        a("v_xor_b32 v10, v10, v2")
        a("v_lshlrev_b32 v10, 4, v10")
        a("v_lshl_add_u32 %s, v1, 8, v10" % vr(VD[0]))
        a("v_xor_b32 %s, 128, %s" % (vr(VD[1]), vr(VD[0])))
        if cfg.get("x_noswz"):
            a("v_lshlrev_b32 v10, 4, v0")
            for r in KD + VD:
                a("v_mov_b32 %s, v10" % vr(r))
        a("s_waitcnt lgkmcnt(0)")
        self.stamp(1)
        a("s_load_dword %s, %s, %d" % (S_EPOCH, S_WS, EPOCH_OFF))
        a("s_add_u32 s32, s6, s53")
        a("s_addc_u32 s33, s7, 0")
        a("s_mov_b32 s34, s55")
        a("s_mov_b32 s35, 0x20000")
        a("s_add_u32 s36, s8, s53")
        a("s_addc_u32 s37, s9, 0")
        a("s_mov_b32 s38, s55")
        a("s_mov_b32 s39, 0x20000")
        self.set_srd_w("s10", "s11", 4096 * 512 * 2)

        def kv_prefetch(k):
            if k == 0:
                self.dma_k(0)
            elif k == 1:
                self.dma_v(0)
            elif k == 2:
                self.dma_k(1)
            else:
                self.dma_v(1)

        if cfg.get("diag") == 3:
            a("v_lshlrev_b32 v10, 2, %s" % V_TID)
            a("v_add_u32 v10, %d, v10" % (MISC + 28672))
            a("v_mov_b32 v11, 0")
            a("s_mov_b64 s[56:57], exec")
            a("v_cmp_gt_u32 vcc, 256, %s" % V_TID)
            a("s_and_b64 exec, exec, vcc")
            a("s_cbranch_execz L_d3z")
            a("ds_write_b32 v10, v11")
            a("L_d3z:")
            a("s_mov_b64 exec, s[56:57]")
            a("s_waitcnt lgkmcnt(0)")
            a("s_barrier")

        def tag_calc():
            a("s_waitcnt lgkmcnt(0)")
            a("s_add_u32 %s, %s, 1" % (S_EPOCH, S_EPOCH))
            a("s_mul_i32 %s, %s, 0x9E3779B1" % (S_TAG, S_EPOCH))

        sched = cfg.get("sched", [0, 0, 2, 3])
        NQP = 64

        def at_point(sc, pt):
            n = 0
            for k in range(4):
                if sc[k] == pt:
                    kv_prefetch(k)
                    n += 4
            return n

        a("v_lshrrev_b32 v14, 3, v0")
        a("v_and_b32 v15, 7, v0")
        a("v_lshlrev_b32 v13, 13, v14")
        a("v_lshl_add_u32 v13, v15, 4, v13")
        a("v_lshlrev_b32 v14, 10, v14")
        a("v_lshl_add_u32 v14, v15, 4, v14")
        if cfg.get("x_noq") == 2:
            a("s_cmp_eq_u32 %s, 0" % S_TAIL)
            a("s_cbranch_scc1 L_np_tail")
        if cfg.get("x_noq"):
            if cfg.get("x_noq") != 2:
                a("s_mov_b32 %s, 1" % S_TAIL)
            for k in range(2 if cfg.get("x_two") else 4):
                kv_prefetch(k)
            a("s_branch L_noq")
        if cfg.get("x_notail"):
            a("s_mov_b32 %s, 1" % S_TAIL)
        TQ = cfg.get("tailq")
        a("s_cmp_eq_u32 %s, 0" % S_TAIL)
        if TQ:
            a("s_cbranch_scc1 L_qprod")
        else:
            a("s_cbranch_scc1 L_np_tail")
            if cfg.get("spread"):
                a("s_cmp_lg_u32 %s, 0" % S_PROD)
            else:
                a("s_sub_u32 %s, s2, %s" % (S_C, S_I))
                a("s_sub_u32 %s, %s, 1" % (S_C, S_C))
                a("s_cmp_lt_u32 %s, %d" % (S_C, NQP))
            a("s_cbranch_scc1 L_qprod")
        if cfg.get("tag_first"):
            tag_calc()
            at_point(sched, 0)
        else:
            at_point(sched, 0)
            tag_calc()
        a("s_branch L_reg_poll")
        if not TQ:
            a("L_np_tail:")
            tag_calc()
            a("s_branch L_tail_pro")

        a("L_qprod:")
        a("v_bfe_u32 v10, v0, 2, 1")
        a("v_lshlrev_b32 v11, 10, v10")
        a("v_lshrrev_b32 v10, 3, v0")
        a("v_lshl_add_u32 v11, v10, 5, v11")
        a("v_and_b32 v10, 3, v0")
        a("v_lshl_add_u32 v11, v10, 3, v11")
        for jj in range(4):
            a("global_load_dwordx2 %s, v11, %s offset:%d" % (vr(64 + 2 * jj, 2), S_X, 256 * jj))
        NB_ = 2 if TQ else 1
        a("s_lshl_b32 s54, %s, 19" % S_WAVE)
        if TQ:
            a("s_lshl_b32 s55, %s, 8" % S_I)
        else:
            a("s_lshl_b32 s55, %s, 7" % S_C)
        a("s_add_u32 s54, s54, s55")
        for beta in range(NB_):
            for k in range(2):
                self.dma_wtile(2 * beta + k, "v13", "s54", 8 * 8192 - 1024, cfg.get("wflags", " nt"))
                if k == 0:
                    a("s_add_u32 s54, s54, %d" % (32 * 8192))
            if beta == 0 and TQ:
                a("s_sub_u32 s54, s54, %d" % (32 * 8192 - 128))
        a("s_waitcnt vmcnt(%d)" % (8 * NB_))
        self.stamp(2)
        for jj in range(3, -1, -1):
            for k in (1, 0):
                src = 64 + 2 * jj + k
                a("v_and_b32 %s, 0xffff0000, %s" % (vr(80 + 4 * jj + 2 * k + 1), vr(src)))
                a("v_lshlrev_b32 %s, 16, %s" % (vr(80 + 4 * jj + 2 * k), vr(src)))
        self.layernorm(80, 104)
        a("v_lshrrev_b32 v1, 4, v0")
        a("v_and_b32 v2, 1, v0")
        a("v_lshlrev_b32 v10, 10, v2")
        a("v_lshl_add_u32 v10, v1, 4, v10")
        a("s_lshl_b32 s53, %s, 7" % S_WAVE)
        a("s_add_u32 s53, s53, %d" % L_XN)
        a("v_add_u32 v10, s53, v10")
        a("v_bfe_u32 v11, v0, 2, 2")
        a("v_lshl_add_u32 v11, v1, 3, v11")
        a("v_and_b32 v2, 3, v0")
        a("v_lshlrev_b32 v2, 3, v2")
        a("v_lshl_add_u32 v11, v11, 7, v2")
        a("v_add_u32 v11, %s, v11" % S_RING)
        a("s_waitcnt lgkmcnt(0)")
        a("ds_read_b128 v[64:67], v10")
        a("ds_read_b128 v[68:71], v10 offset:64")
        a("v_lshlrev_b32 v10, 3, v0")
        a("s_lshl_b32 s53, %s, %d" % (S_WAVE, 10 if TQ else 9))
        a("s_add_u32 s53, s53, %d" % L_STAGE)
        a("v_add_u32 v10, s53, v10")
        for beta in range(NB_):
            a("s_waitcnt vmcnt(%d)" % (8 * (NB_ - 1 - beta)))
            if beta == NB_ - 1:
                self.stamp(4)
            for kk in range(2):
                for t in range(4):
                    for h in range(2):
                        a("ds_read_b64_tr_b16 %s, v11 offset:%d" % (vr(16 + 16 * kk + 4 * t + 2 * h, 2), 4096 * (2 * beta + kk) + 512 * h + 32 * t))
            a("s_waitcnt lgkmcnt(0)")
            D = 80 if beta == 0 else 48
            for kk in range(2):
                for t in range(4):
                    c = "0" if kk == 0 else vr(D + 4 * t, 4)
                    a("v_mfma_f32_16x16x32_bf16 %s, %s, %s, %s" % (vr(D + 4 * t, 4), vr(64 + 4 * kk, 4), vr(16 + 16 * kk + 4 * t, 4), c))
            for t in range(1, 4):
                for r in range(2):
                    a("v_mov_b32_dpp %s, %s quad_perm:[0,1,2,3] row_mask:0x%x bank_mask:0xf" % (vr(D + r), vr(D + 4 * t + r), 1 << t))
            a("ds_write_b64 v10, %s offset:%d" % (vr(D, 2), 512 * beta))
        a("s_waitcnt lgkmcnt(0)")
        a("s_barrier")
        self.stamp(5)
        tag_calc()
        if TQ:
            a("s_cmp_ge_u32 %s, 2" % S_WAVE)
        else:
            a("s_cmp_lg_u32 %s, 0" % S_WAVE)
        a("s_cbranch_scc1 L_noqpub")
        a("v_lshlrev_b32 v10, 3, v0")
        if TQ:
            a("s_lshl_b32 s53, %s, 9" % S_WAVE)
            a("v_add_u32 v10, s53, v10")
        a("v_add_u32 v11, %d, v10" % L_STAGE)
        for ww in range(8):
            a("ds_read_b64 %s, v11 offset:%d" % (vr(64 + 2 * ww, 2), (1024 if TQ else 512) * ww))
        if TQ:
            a("s_lshl_b32 s53, %s, 10" % S_I)
        else:
            a("s_lshl_b32 s53, %s, 9" % S_C)
        a("s_add_u32 s53, s53, %d" % QB_OFF)
        a("v_add_u32 v11, s53, v10")
        a("s_waitcnt lgkmcnt(0)")
        for ww in range(1, 8):
            a("v_add_f32 v64, v64, %s" % vr(64 + 2 * ww))
            a("v_add_f32 v65, v65, %s" % vr(65 + 2 * ww))
        a("v_cvt_pk_bf16_f32 v64, v64, v65")
        a("v_mov_b32 v65, %s" % S_TAG)
        a("global_store_dwordx2 v11, v[64:65], %s sc1" % S_WS)
        a("L_noqpub:")
        if TQ:
            a("s_branch L_tail_pro")
        else:
            at_point(sched, 0)
            a("s_branch L_reg_poll")

        def clears(tail):
            if cfg.get("tags", 1) or (cfg.get("x_nowr") and not cfg.get("x_clear")):
                return
            for k in range(4):
                a("v_mov_b32 %s, -1" % vr(72 + k))
            a("s_lshl_b32 s53, s2, 11")
            a("s_add_u32 s53, s53, %d" % H1_OFF)
            a("v_lshl_add_u32 v76, v0, 4, s53")
            a("global_store_dwordx4 v76, v[72:75], %s sc1" % S_WS)
            a("global_store_dwordx4 v76, v[72:75], %s offset:1024 sc1" % S_WS)
            a("s_lshl_b32 s53, s2, 7")
            a("s_add_u32 s53, s53, %d" % ML_OFF)
            a("v_lshl_add_u32 v77, v0, 4, s53")
            a("s_mov_b64 exec, 0xff")
            a("global_store_dwordx4 v77, v[72:75], %s sc1" % S_WS)
            a("s_mov_b64 exec, -1")
            if dyn and not tail and not cfg.get("x_nowr"):
                a("s_cmp_lg_u32 %s, 1" % S_SPLIT)
                a("s_cbranch_scc1 L_noctr")
                a("s_lshl_b32 s53, %s, 7" % S_G)
                a("s_add_u32 s53, s53, %d" % CTR_OFF)
                a("v_mov_b32 v77, s53")
                a("v_mov_b32 v76, 0")
                a("s_mov_b64 exec, 1")
                a("global_store_dword v77, v76, %s sc1" % S_WS)
                a("s_mov_b64 exec, -1")
                a("L_noctr:")
            if tail:
                for off in (H2_OFF, H4_OFF):
                    a("s_lshl_b32 s53, %s, 12" % S_I)
                    a("s_add_u32 s53, s53, %d" % off)
                    a("v_lshl_add_u32 v76, v0, 4, s53")
                    for k in range(4):
                        a("global_store_dwordx4 v76, v[72:75], %s offset:%d sc1" % (S_WS, 1024 * k))
                a("s_lshl_b32 s53, %s, 7" % S_I)
                a("s_add_u32 s53, s53, %d" % H3_OFF)
                a("v_lshl_add_u32 v77, v0, 4, s53")
                a("s_mov_b64 exec, 0xff")
                a("global_store_dwordx4 v77, v[72:75], %s sc1" % S_WS)
                a("s_mov_b64 exec, -1")

        def loop_consts():
            a("v_lshrrev_b32 v1, 4, v0")
            a("v_and_b32 v2, 15, v0")
            a("v_xor_b32 v10, v1, v2")
            a("v_lshlrev_b32 v10, 4, v10")
            a("v_lshl_add_u32 v10, v2, 8, v10")
            a("v_add_u32 %s, %s, v10" % (vr(KA[0]), S_RING))
            for j in range(1, 4):
                a("v_xor_b32 %s, %d, %s" % (vr(KA[j]), j << 6, vr(KA[0])))
            a("v_lshrrev_b32 v10, 2, v2")
            a("v_lshl_add_u32 v10, v1, 2, v10")
            a("v_and_b32 v11, 7, v10")
            a("v_lshlrev_b32 v11, 5, v11")
            a("v_lshl_add_u32 v11, v10, 8, v11")
            a("v_and_b32 v10, 3, v2")
            a("v_lshl_add_u32 v11, v10, 3, v11")
            a("s_add_u32 s53, %s, 4096" % S_RING)
            a("v_add_u32 %s, s53, v11" % vr(VA[0]))
            for t in range(1, 8):
                a("v_xor_b32 %s, %d, %s" % (vr(VA[t]), t << 5, vr(VA[0])))
            for k in range(32):
                a("v_mov_b32 %s, 0" % vr(VO + k))
            a("v_mov_b32 %s, 0x%08x" % (vr(V_M), f2u(-3.0e38)))
            a("v_mov_b32 %s, 0" % vr(V_L))
            a("v_mul_f32 %s, %s, %s" % (vr(V_MC), S_CS, vr(V_M)))
            merge_consts()

        def merge_consts():
            a("v_lshrrev_b32 v1, 4, v0")
            a("v_and_b32 v2, 15, v0")
            a("v_and_b32 v105, 3, v2")
            a("v_mul_u32_u24 v10, 528, v105")
            a("v_lshrrev_b32 v105, 2, v2")
            a("v_lshl_add_u32 v10, v105, 6, v10")
            a("v_lshl_add_u32 v10, v1, 4, v10")
            a("s_mul_i32 s53, %s, 2112" % S_WAVE)
            a("s_add_u32 s53, s53, %d" % L_STAGE)
            a("v_add_u32 v10, s53, v10")
            a("v_lshlrev_b32 v11, 6, v2")
            a("s_lshl_b32 s53, %s, 3" % S_WAVE)
            a("s_add_u32 s53, s53, %d" % L_ML)
            a("v_add_u32 v11, s53, v11")
            a("s_lshl_b32 s53, %s, 11" % S_SLOT)
            a("s_add_u32 s53, s53, %d" % H1_OFF)
            a("v_lshl_add_u32 v12, %s, 2, s53" % V_TID)
            a("s_lshr_b32 s53, %s, 1" % S_WAVE)
            a("s_mul_i32 s53, s53, 528")
            a("s_add_u32 s53, s53, %d" % L_STAGE)
            a("v_and_b32 v13, 127, %s" % V_TID)
            a("v_lshl_add_u32 v13, v13, 2, s53")
            if cfg.get("tags", 1):
                a("s_and_b32 s53, %s, 0xff" % S_EPOCH)
                a("v_mov_b32 %s, s53" % vr(V_TAG8))
                a("s_movk_i32 %s, 0xff" % S_FF)

        def q_gather():
            a("s_and_b32 s54, %s, 7" % S_G)
            a("s_lshl_b32 s54, s54, 12")
            a("s_add_u32 s53, s54, %d" % QB_OFF)
            a("v_lshl_add_u32 v111, v0, 4, s53")
            a("s_lshr_b32 s54, %s, 3" % S_G)
            a("s_mul_i32 s54, s54, 0x02020202")
            a("s_add_u32 s59, s54, 0x05040100")
            a("s_mov_b32 %s, 0" % S_SPIN)

        def q_issue(base=64, acc=False):
            for jj in range(4):
                dst = (ar if acc else vr)(base + 4 * jj, 4)
                a("global_load_dwordx4 %s, v111, %s offset:%d sc1" % (dst, S_WS, 1024 * jj))

        def q_check(lbl_ok, base=64):
            a("v_xor_b32 v96, %s, %s" % (S_TAG, vr(base + 1)))
            for r in range(3, 16, 2):
                a("v_xor_b32 v97, %s, %s" % (S_TAG, vr(base + r)))
                a("v_or_b32 v96, v96, v97")
            a("v_cmp_ne_u32 vcc, 0, v96")
            a("s_cbranch_vccz %s" % lbl_ok)

        def q_store(base):
            a("v_lshlrev_b32 v97, 2, v0")
            a("v_add_u32 v97, %d, v97" % L_Q)
            for jj in range(4):
                a("v_perm_b32 %s, %s, %s, s59" % (vr(base + 4 * jj), vr(base + 4 * jj + 2), vr(base + 4 * jj)))
                a("ds_write_b32 v97, %s offset:%d" % (vr(base + 4 * jj), 256 * jj))
            a("s_waitcnt lgkmcnt(0)")

        def q_finish(tag, first_wait, more=()):
            a("s_waitcnt vmcnt(%d)" % first_wait)
            self.stamp(6)
            q_check("L_qok_%s" % tag)
            for base, wait in more:
                a("s_waitcnt vmcnt(%d)" % wait)
                for r in range(16):
                    a("v_accvgpr_read_b32 %s, %s" % (vr(64 + r), ar(base + r)))
                q_check("L_qok_%s" % tag)
            a("L_qretry_%s:" % tag)
            q_issue()
            a("s_add_u32 %s, %s, 1" % (S_SPIN, S_SPIN))
            a("s_cmp_gt_u32 %s, %d" % (S_SPIN, SPIN_LIMIT))
            a("s_cbranch_scc1 L_qok_%s" % tag)
            a("s_waitcnt vmcnt(0)")
            q_check("L_qok_%s" % tag)
            a("s_branch L_qretry_%s" % tag)
            a("L_qok_%s:" % tag)
            q_store(64)

        a("L_reg_poll:")
        if cfg.get("abuf", 1):
            loop_consts()

            def bump(q):
                a("s_add_u32 %s, %s, 65536" % (S_OFF[q], S_OFF[q]))

            def buffer_k(j):
                a("s_waitcnt vmcnt(4)")
                for jj in range(4):
                    a("ds_read_b128 %s, %s offset:%d" % (ar(32 * j + 4 * jj, 4), vr(KA[jj]), 8192 * j))
                a("s_waitcnt lgkmcnt(0)")

            def buffer_v(j):
                a("s_waitcnt vmcnt(4)")
                for t in range(8):
                    a("ds_read_b64_tr_b16 %s, %s offset:%d" % (ar(32 * j + 16 + 2 * t, 2), vr(VA[t]), 8192 * j))
                a("s_waitcnt lgkmcnt(0)")

            buffer_k(0)
            self.dma_k(1)
            buffer_v(0)
            self.dma_v(1)
            buffer_k(1)
            bump(0)
            self.dma_k(0)
            buffer_v(1)
            self.dma_v(0)
            a("s_cmp_lg_u32 %s, 0" % S_WAVE)
            a("s_cbranch_scc1 L_reg_other")
            q_gather()
            q_issue(64)
            a("s_waitcnt vmcnt(8)")
            bump(1)
            self.dma_k(1)
            q_issue(80, True)
            a("s_waitcnt vmcnt(12)")
            self.dma_v(1)
            q_issue(64, True)
            q_finish("r", 16, more=((80, 8), (64, 0)))
            a("s_barrier")
            clears(False)
            a("s_branch L_reg_join")
            a("L_reg_other:")
            a("s_waitcnt vmcnt(4)")
            bump(1)
            self.dma_k(1)
            a("s_waitcnt vmcnt(4)")
            self.dma_v(1)
            a("s_barrier")
            a("L_reg_join:")
            a("v_lshrrev_b32 v1, 4, v0")
            a("v_and_b32 v2, 3, v0")
            a("v_lshlrev_b32 v2, 8, v2")
            a("v_lshl_add_u32 v2, v1, 4, v2")
            a("v_add_u32 v2, %d, v2" % L_Q)
            for j in range(4):
                a("ds_read_b128 %s, v2 offset:%d" % (vr(VQ + 4 * j, 4), 64 * j))
            a("s_waitcnt lgkmcnt(0)")
            self.stamp(7)
            if cfg.get("abuf") == 1:
                self.buffered_steps()
            else:
                a("s_mov_b32 %s, 1" % S_BUF)
            a("s_mov_b32 %s, 2" % S_STEP)
            a("v_mov_b32 %s, 0" % vr(V_FLAG))
            a("s_branch L_loop_entry")
        else:
            a("s_cmp_lg_u32 %s, 0" % S_WAVE)
            a("s_cbranch_scc1 L_reg_other")
            q_gather()
            if cfg.get("consts_first", 1):
                loop_consts()
            if cfg.get("qwait") is not None:
                a("s_waitcnt vmcnt(%d)" % cfg["qwait"])
            q_issue()
            a("s_barrier")
            n = at_point(sched, 2)
            if not cfg.get("consts_first", 1):
                loop_consts()
            q_finish("r", n)
            a("s_barrier")
            at_point(sched, 3)
            clears(False)
            a("s_branch L_pro_done")
            a("L_reg_other:")
            loop_consts()
            a("s_barrier")
            at_point(sched, 2)
            a("s_barrier")
            at_point(sched, 3)
            a("s_branch L_pro_done")

        a("L_tail_pro:")
        if cfg.get("tags", 1):
            a("s_cmp_lg_u32 %s, 7" % S_WAVE)
            a("s_cbranch_scc1 L_noxcc")
            a("s_and_b32 s53, %s, 0xfffffff0" % S_TAG)
            a("s_or_b32 s53, s53, %s" % S_XCC)
            a("v_mov_b32 v10, s53")
            a("s_lshl_b32 s53, %s, 2" % S_I)
            a("s_add_u32 s53, s53, %d" % MODE_OFF)
            a("v_mov_b32 v11, s53")
            a("s_mov_b64 exec, 1")
            a("global_store_dword v11, v10, %s sc1" % S_WS)
            a("s_mov_b64 exec, -1")
            a("L_noxcc:")
        self.set_srd_w("s12", "s13", 4096 * 512 * 2)
        a("s_lshl_b32 s54, %s, 17" % S_I)
        a("s_lshl_b32 s55, %s, 7" % S_WAVE)
        a("s_add_u32 s54, s54, s55")
        for j in range(4):
            self.dma_wtile(j, "v14", "s54", 7168, cfg.get("wflags", " nt"))
            if j < 3:
                a("s_add_u32 s54, s54, %d" % (32 * 1024))
        a("v_bfe_u32 v1, v0, 4, 1")
        a("v_and_b32 v2, 7, v0")
        a("v_lshrrev_b32 v10, 5, v0")
        a("v_lshl_add_u32 v2, v2, 1, v10")
        a("s_lshl_b32 s53, %s, 4" % S_I)
        a("v_add_u32 v2, s53, v2")
        a("v_lshlrev_b32 v10, 1, v2")
        a("v_lshl_add_u32 v11, v1, 10, v10")
        a("global_load_ushort %s, v11, %s" % (vr(V_XRES), S_X))
        a("global_load_ushort %s, v10, s[22:23]" % vr(V_B2))
        a("v_and_b32 v2, 15, v0")
        a("s_lshl_b32 s53, %s, 6" % S_I)
        a("s_lshl_b32 s54, %s, 4" % S_WAVE)
        a("s_add_u32 s53, s53, s54")
        a("s_min_u32 s53, s53, %d" % (1792 - 16))
        a("v_add_u32 v2, s53, v2")
        a("v_lshlrev_b32 v2, 1, v2")
        a("global_load_ushort %s, v2, s[18:19]" % vr(V_B1))
        a("v_lshrrev_b32 v1, 4, v0")
        a("v_bfe_u32 v2, v0, 2, 2")
        a("v_lshl_add_u32 v2, v1, 3, v2")
        a("v_and_b32 v1, 3, v0")
        a("v_lshlrev_b32 v1, 3, v1")
        a("v_lshl_add_u32 v10, v2, 7, v1")
        a("v_mov_b32 v11, v10")
        a("v_add_u32 v10, %s, v10" % S_RING)

        def tr128(slot, abase):
            for t in range(4):
                for h in range(2):
                    a("ds_read_b64_tr_b16 %s, v10 offset:%d" % (ar(abase + 4 * t + 2 * h, 2), 4096 * slot + 512 * h + 32 * t))

        def tail_q(tag):
            if cfg.get("x_noq"):
                return
            a("s_cmp_lg_u32 %s, 0" % S_WAVE)
            a("s_cbranch_scc1 L_tq_skip_%s" % tag)
            q_gather()
            q_issue()
            q_finish(tag, 0)
            a("L_tq_skip_%s:" % tag)

        a("s_cmp_ge_u32 %s, 28" % S_I)
        a("s_cbranch_scc1 L_tp_noffn")
        wfl = cfg.get("wflags", " nt")
        a("v_lshrrev_b32 v13, 3, v0")
        a("s_movk_i32 s53, 3584")
        a("v_mul_lo_u32 v13, s53, v13")
        a("v_and_b32 v15, 7, v0")
        a("v_lshl_add_u32 v13, v15, 4, v13")
        a("s_mul_i32 s54, %s, %d" % (S_WAVE, 64 * 3584))
        a("s_lshl_b32 s55, %s, 7" % S_I)
        a("s_add_u32 s54, s54, s55")
        a("s_lshl_b32 s55, %s, 16" % S_I)
        a("s_and_b32 s56, %s, 1" % S_WAVE)
        a("s_lshl_b32 s56, s56, 15")
        a("s_add_u32 s55, s55, s56")
        a("s_lshr_b32 s56, %s, 1" % S_WAVE)
        a("s_lshl_b32 s56, s56, 8")
        a("s_add_u32 s55, s55, s56")
        for k in range(4):
            a("s_waitcnt vmcnt(12)")
            tr128(k, 16 * k)
            a("s_waitcnt lgkmcnt(0)")
            if k == 0:
                self.set_srd_w("s16", "s17", 512 * 1792 * 2)
            if k == 2:
                self.set_srd_w("s20", "s21", 1792 * 512 * 2)
            if k < 2:
                self.dma_wtile(k, "v13", "s54", 8 * 3584 - 1024, wfl)
                a("s_add_u32 s54, s54, %d" % (32 * 3584))
            else:
                self.dma_wtile(k, "v14", "s55", 7168, wfl)
                a("s_add_u32 s55, s55, 128")
        tail_q("a")
        a("s_waitcnt vmcnt(0)")
        a("s_barrier")
        a("s_cmp_ge_u32 %s, 4" % S_WAVE)
        a("s_cbranch_scc1 L_tp_w2")
        a("s_lshl_b32 s53, %s, 5" % S_WAVE)
        a("v_add_u32 v11, s53, v11")
        a("v_add_u32 v15, 0x10000, v11")
        for kt in range(16):
            for h in range(2):
                base = "v11" if kt < 8 else "v15"
                a("ds_read_b64_tr_b16 %s, %s offset:%d" % (ar(64 + 4 * kt + 2 * h, 2), base, ((kt >> 1) & 3) * 16384 + (kt & 1) * 4096 + 512 * h))
            if kt % 4 == 3:
                a("s_waitcnt lgkmcnt(0)")
        a("s_branch L_tp_rd")
        a("L_tp_w2:")
        a("s_sub_u32 s53, %s, 4" % S_WAVE)
        a("s_lshl_b32 s53, s53, 15")
        a("v_add_u32 v11, s53, v11")
        for q in range(4):
            for tt in range(4):
                for h in range(2):
                    a("ds_read_b64_tr_b16 %s, v11 offset:%d" % (ar(64 + 16 * q + 4 * tt + 2 * h, 2), (q >> 1) * 16384 + (2 + (q & 1)) * 4096 + 32 * tt + 512 * h))
            a("s_waitcnt lgkmcnt(0)")
        a("L_tp_rd:")
        a("s_barrier")
        for k in range(4):
            kv_prefetch(k)
        a("s_branch L_tp_end")
        a("L_tp_noffn:")
        tail_q("b")
        a("s_waitcnt vmcnt(0)")
        for k in range(4):
            tr128(k, 16 * k)
            a("s_waitcnt lgkmcnt(0)")
            kv_prefetch(k)
        a("L_tp_end:")
        loop_consts()
        a("s_barrier")
        a("s_cmp_lg_u32 %s, 0" % S_WAVE)
        a("s_cbranch_scc1 L_pro_done")
        clears(True)
        if cfg.get("x_noq"):
            a("s_branch L_pro_done")
            a("L_noq:")
            for k in range(cfg.get("x_delay", 0)):
                a("s_sleep 32")
            loop_consts()
        a("L_pro_done:")

        a("v_lshrrev_b32 v1, 4, v0")
        a("v_and_b32 v2, 3, v0")
        a("v_lshlrev_b32 v2, 8, v2")
        a("v_lshl_add_u32 v2, v1, 4, v2")
        a("v_add_u32 v2, %d, v2" % L_Q)
        for j in range(4):
            a("ds_read_b128 %s, v2 offset:%d" % (vr(VQ + 4 * j, 4), 64 * j))
        self.stamp(7)
        if not dyn:
            a("s_cmp_lg_u32 %s, 0" % S_TAIL)
            a("s_cbranch_scc1 L_noflag")
            a("v_lshlrev_b32 v11, 2, v0")
            a("global_load_dword %s, v11, s[26:27] sc1" % vr(V_FLAG))
            a("L_noflag:")
        else:
            a("v_mov_b32 %s, 0" % vr(V_FLAG))
        a("s_waitcnt lgkmcnt(0)")

        a("L_loop_entry:")
        depth = cfg.get("depth", "shallow")

        def step(par, tag, kwait, vwait, post_k, post_v, late_v, pre_k=(), pre_v=()):
            T0, T1 = 105, 106

            def bump(q):
                a("s_add_u32 %s, %s, 65536" % (S_OFF[q], S_OFF[q]))

            def issue(what):
                for kind, q, b in what:
                    if b:
                        bump(q)
                    (self.dma_k if kind == "k" else self.dma_v)(q)

            def vread():
                a("s_waitcnt vmcnt(%d)" % vwait)
                issue(pre_v)
                for t in range(8):
                    a("ds_read_b64_tr_b16 %s, %s offset:%d" % (vr(VV + 2 * t, 2), vr(VA[t]), 8192 * par))

            a("s_waitcnt vmcnt(%d)" % kwait)
            a("s_cmp_ge_u32 %s, %s" % (S_OFF[par], S_NB))
            a("s_cbranch_scc1 L_skip%s" % tag)
            issue(pre_k)
            for j in range(4):
                a("ds_read_b128 %s, %s offset:%d" % (vr(VK + 4 * j, 4), vr(KA[j]), 8192 * par))
            a("s_waitcnt lgkmcnt(0)")
            a("s_barrier")
            a("v_mfma_f32_16x16x32_bf16 %s, %s, %s, 0" % (vr(VS, 4), vr(VK, 4), vr(VQ, 4)))
            issue(post_k)
            for j in range(1, 4):
                a("v_mfma_f32_16x16x32_bf16 %s, %s, %s, %s" % (vr(VS, 4), vr(VK + 4 * j, 4), vr(VQ + 4 * j, 4), vr(VS, 4)))
            if not late_v:
                vread()
            for r in (0, 2):
                a("v_cvt_pk_bf16_f32 %s, %s, %s" % (vr(T0), vr(VS + r), vr(VS + r + 1)))
                a("v_lshlrev_b32 %s, 16, %s" % (vr(VS + r), vr(T0)))
                a("v_and_b32 %s, 0xffff0000, %s" % (vr(VS + r + 1), vr(T0)))
                a("v_mul_f32 %s, %s, %s" % (vr(VS + r), S_SC, vr(VS + r)))
                a("v_mul_f32 %s, %s, %s" % (vr(VS + r + 1), S_SC, vr(VS + r + 1)))
                a("v_cvt_pk_bf16_f32 %s, %s, %s" % (vr(T0), vr(VS + r), vr(VS + r + 1)))
                a("v_lshlrev_b32 %s, 16, %s" % (vr(VS + r), vr(T0)))
                a("v_and_b32 %s, 0xffff0000, %s" % (vr(VS + r + 1), vr(T0)))
            a("v_max3_f32 %s, %s, %s, %s" % (vr(T0), vr(VS), vr(VS + 1), vr(VS + 2)))
            a("v_max_f32 %s, %s, %s" % (vr(T0), vr(T0), vr(VS + 3)))
            self.allreduce_hi("v_max_f32", vr(T0), vr(T1))
            a("v_cmp_gt_f32 vcc, %s, %s" % (vr(T0), vr(V_M)))
            a("s_cbranch_vccz L_nors%s" % tag)
            a("v_max_f32 %s, %s, %s" % (vr(T0), vr(T0), vr(V_M)))
            a("v_sub_f32 %s, %s, %s" % (vr(T1), vr(V_M), vr(T0)))
            a("v_mul_f32 %s, %s, %s" % (vr(T1), S_CS, vr(T1)))
            a("v_exp_f32 %s, %s" % (vr(T1), vr(T1)))
            a("v_mov_b32 %s, %s" % (vr(V_M), vr(T0)))
            a("v_mul_f32 %s, %s, %s" % (vr(V_MC), S_CS, vr(T0)))
            a("v_mul_f32 %s, %s, %s" % (vr(V_L), vr(V_L), vr(T1)))
            for k in range(32):
                a("v_mul_f32 %s, %s, %s" % (vr(VO + k), vr(VO + k), vr(T1)))
            a("L_nors%s:" % tag)
            for r in range(4):
                a("v_fma_f32 %s, %s, %s, -%s" % (vr(VS + r), vr(VS + r), S_CS, vr(V_MC)))
            for r in range(4):
                a("v_exp_f32 %s, %s" % (vr(VS + r), vr(VS + r)))
            a("v_add_f32 %s, %s, %s" % (vr(T0), vr(VS), vr(VS + 1)))
            a("v_add_f32 %s, %s, %s" % (vr(T1), vr(VS + 2), vr(VS + 3)))
            a("v_cvt_pk_bf16_f32 %s, %s, %s" % (vr(VP), vr(VS), vr(VS + 1)))
            a("v_cvt_pk_bf16_f32 %s, %s, %s" % (vr(VP + 1), vr(VS + 2), vr(VS + 3)))
            a("v_add_f32 %s, %s, %s" % (vr(T0), vr(T0), vr(T1)))
            a("v_add_f32 %s, %s, %s" % (vr(V_L), vr(V_L), vr(T0)))
            if late_v:
                vread()
            a("s_waitcnt lgkmcnt(0)")
            issue(post_v)
            for t in range(8):
                a("v_mfma_f32_16x16x16_bf16 %s, %s, %s, %s" % (vr(VO + 4 * t, 4), vr(VV + 2 * t, 2), vr(VP, 2), vr(VO + 4 * t, 4)))

            a("L_next%s:" % tag)
            a("s_sub_u32 %s, %s, 1" % (S_CNT, S_CNT))
            a("s_cmp_lg_u32 %s, %s" % (S_CNT, S_FSTEP))
            a("s_cbranch_scc1 L_nofl%s" % tag)
            a("s_or_b32 s53, %s, 0x80" % S_XCC)
            a("v_mov_b32 %s, s53" % vr(T0))
            a("v_mov_b32 %s, s2" % vr(T1))
            a("s_mov_b64 exec, 1")
            a("global_store_byte %s, %s, s[26:27] sc1" % (vr(T1), vr(T0)))
            a("s_mov_b64 exec, -1")
            a("L_nofl%s:" % tag)
            a("s_cmp_eq_u32 %s, 0" % S_CNT)

        if not dyn:
            tags = ["0", "1"]
            if depth == "deep":
                steady = lambda p: (12, 12, [("k", p, True)], [("v", p, False)], False)
            elif depth == "shallow":
                steady = lambda p: (4, 4, [("k", p ^ 1, True)], [("v", p ^ 1, False)], False)
                step(0, "p0", 12, 8, [], [], False)
                tags.append("p0")
            elif depth == "mid":
                steady = lambda p: (4, 8, [("k", p ^ 1, True), ("v", p ^ 1, False)], [], False)
                step(0, "p0", 12, 8, [], [], False)
                tags.append("p0")
            elif depth == "serial":
                steady = lambda p: (0, 0, [("v", p, False)], [("k", p ^ 1, True)], True)
                step(0, "p0", 12, 8, [], [], False)
                step(1, "p1", 4, 0, [], [("k", 0, True)], False)
                tags += ["p0", "p1"]
            elif depth == "serial2":
                steady = lambda p: (0, 0, [], [], True, [("v", p, False)], [("k", p ^ 1, True)])
                step(0, "p0", 12, 8, [], [], False)
                step(1, "p1", 4, 0, [], [], False, [], [("k", 0, True)])
                tags += ["p0", "p1"]
            elif depth == "pair":
                steady = lambda p: (4, 0, [], [], True, [], [("k", p ^ 1, True), ("v", p ^ 1, False)])
                step(0, "p0", 12, 8, [], [], False)
                tags.append("p0")
            elif depth == "pair2":
                steady = lambda p: (4, 0, [], [], False, [], [("k", p ^ 1, True), ("v", p ^ 1, False)])
                step(0, "p0", 12, 8, [], [], False)
                tags.append("p0")
            first = 0 if depth in ("deep", "serial", "serial2") else 1
            if first == 1:
                a("s_branch L_loop_odd")
            a("L_loop:")
            step(0, "0", *steady(0))
            a("s_cbranch_scc1 L_loop_done")
            a("L_loop_odd:")
            step(1, "1", *steady(1))
            a("s_cbranch_scc0 L_loop")
            a("s_branch L_loop_done")
            for tag in tags:
                a("L_skip%s:" % tag)
                a("s_barrier")
                a("s_branch L_next%s" % tag)
        else:
            self.dyn_loop(SR, ST, P0)
        a("L_loop_done:")
        self.stamp(8)
        if cfg.get("codepf", 1):
            a("s_cmp_lg_u32 %s, 0" % S_TAIL)
            a("s_cbranch_scc1 L_nocpf")
            a("s_getpc_b64 s[54:55]")
            a("L_cpf_pc:")
            a("s_add_u32 s54, s54, L_tail_code-L_cpf_pc")
            a("s_addc_u32 s55, s55, 0")
            a("v_lshlrev_b32 v2, 4, v0")
            a("s_lshl_b32 s53, %s, 10" % S_WAVE)
            a("v_add_u32 v2, s53, v2")
            a("v_min_u32 v2, L_end-L_tail_code-12, v2")
            a("global_load_dwordx4 v[72:75], v2, s[54:55]")
            a("L_nocpf:")
        if dyn:
            a("s_cmp_lg_u32 %s, 0" % S_TAIL)
            a("s_cbranch_scc1 L_noflagld")
            if cfg.get("tags", 1):
                a("v_and_b32 v2, 31, v0")
                a("v_lshlrev_b32 v2, 2, v2")
                a("v_add_u32 v2, %d, v2" % MODE_OFF)
                a("global_load_dword %s, v2, %s sc1" % (vr(V_FLAG), S_WS))
            else:
                a("v_lshlrev_b32 v2, 2, v0")
                a("global_load_dword %s, v2, s[26:27] sc1" % vr(V_FLAG))
            a("L_noflagld:")

        if cfg.get("premerge"):
            assert cfg.get("lastskip") and cfg.get("tags", 1)
            for u in range(2):
                for j in range(1, 4):
                    for r in range(4):
                        a("v_mov_b32_dpp %s, %s quad_perm:[0,1,2,3] row_mask:0xf bank_mask:0x%x" % (vr(VO + 16 * u + r), vr(VO + 16 * u + 4 * j + r), 1 << j))
                a("ds_write_b128 v10, %s offset:%d" % (vr(VO + 16 * u, 4), 256 * u))
            a("s_waitcnt lgkmcnt(0)")
            self.stamp2(1)
            a("s_barrier")
            self.stamp2(2)
            for ww in range(8):
                a("ds_read_b32 %s, v13 offset:%d" % (vr(32 + ww), 2112 * ww))
            a("s_waitcnt lgkmcnt(7)")
            self.stamp2(3)
            a("v_mul_f32 v42, v16, v32")
            for ww in range(1, 8):
                a("s_waitcnt lgkmcnt(%d)" % (7 - ww))
                a("v_fmac_f32 v42, %s, %s" % (vr(16 + 2 * ww), vr(32 + ww)))
            self.tagged("v42", "v42")
            a("global_store_dword v12, v42, %s sc1" % S_WS)
            a("s_and_b32 s54, %s, 1" % S_WAVE)
            a("s_cmp_lg_u32 s54, 0")
            a("s_cbranch_scc1 L_noml")
            a("s_mov_b64 exec, 1")
            a("global_store_dwordx3 v11, v[68:70], %s sc1" % S_WS)
            a("s_mov_b64 exec, -1")
        else:
            self.allreduce_hi("v_add_f32", vr(V_L), "v105")
            for u in range(2):
                for j in range(1, 4):
                    for r in range(4):
                        a("v_mov_b32_dpp %s, %s quad_perm:[0,1,2,3] row_mask:0xf bank_mask:0x%x" % (vr(VO + 16 * u + r), vr(VO + 16 * u + 4 * j + r), 1 << j))
                a("ds_write_b128 v10, %s offset:%d" % (vr(VO + 16 * u, 4), 256 * u))
            a("s_mov_b64 exec, 0xf")
            a("ds_write_b64 v11, %s" % vr(V_M, 2))
            a("s_mov_b64 exec, -1")
            a("s_lshr_b32 s53, %s, 1" % S_WAVE)
            a("s_lshl_b32 s54, s53, 6")
            a("s_add_u32 s54, s54, %d" % L_ML)
            a("v_mov_b32 v10, s54")
            a("s_lshl_b32 s54, %s, 7" % S_SLOT)
            a("s_lshl_b32 s55, s53, 4")
            a("s_add_u32 s54, s54, s55")
            a("s_add_u32 s54, s54, %d" % ML_OFF)
            a("v_mov_b32 v11, s54")
            a("s_waitcnt lgkmcnt(0)")
            self.stamp2(1)
            a("s_barrier")
            self.stamp2(2)
            for k in range(4):
                a("ds_read_b128 %s, v10 offset:%d" % (vr(16 + 4 * k, 4), 16 * k))
            for ww in range(8):
                a("ds_read_b32 %s, v13 offset:%d" % (vr(32 + ww), 2112 * ww))
            a("s_waitcnt lgkmcnt(8)")
            self.stamp2(3)
            a("v_max3_f32 v40, v16, v18, v20")
            a("v_max3_f32 v40, v40, v22, v24")
            a("v_max3_f32 v40, v40, v26, v28")
            a("v_max_f32 v40, v40, v30")
            a("v_mul_f32 v41, %s, v40" % S_CS)
            for ww in range(8):
                a("v_fma_f32 %s, %s, %s, -v41" % (vr(16 + 2 * ww), vr(16 + 2 * ww), S_CS))
            for ww in range(8):
                a("v_exp_f32 %s, %s" % (vr(16 + 2 * ww), vr(16 + 2 * ww)))
            a("s_waitcnt lgkmcnt(0)")
            a("v_mul_f32 v42, v16, v32")
            a("v_mul_f32 v43, v16, v17")
            for ww in range(1, 8):
                a("v_fmac_f32 v42, %s, %s" % (vr(16 + 2 * ww), vr(32 + ww)))
                a("v_fmac_f32 v43, %s, %s" % (vr(16 + 2 * ww), vr(17 + 2 * ww)))
            self.tagged("v42", "v42")
            a("global_store_dword v12, v42, %s sc1" % S_WS)
            a("v_mov_b32 v42, v41")
            a("v_mov_b32 v44, %s" % S_TAG)
            a("s_and_b32 s54, %s, 1" % S_WAVE)
            a("s_cmp_lg_u32 s54, 0")
            a("s_cbranch_scc1 L_noml")
            a("s_mov_b64 exec, 1")
            if cfg.get("tags", 1):
                a("global_store_dwordx3 v11, v[42:44], %s sc1" % S_WS)
            else:
                a("global_store_dwordx2 v11, v[42:43], %s sc1" % S_WS)
            a("s_mov_b64 exec, -1")
        a("L_noml:")
        self.stamp(9)
        a("s_cmp_lg_u32 %s, 0" % S_TAIL)
        a("s_cbranch_scc1 L_finish")
        if cfg.get("x_noq") or cfg.get("x_notail"):
            a("s_branch L_finish")

        a("L_tail_code:")
        self.tail()
        a("L_finish:")
        if cfg.get("diag") == 3:
            a("s_waitcnt vmcnt(0) lgkmcnt(0)")
            a("s_lshl_b32 s53, %s, 7" % S_WAVE)
            a("s_add_u32 s53, s53, %d" % (MISC + 28672))
            a("v_lshl_add_u32 v10, v0, 2, s53")
            a("s_mov_b32 exec_lo, -1")
            a("s_mov_b32 exec_hi, 0")
            a("ds_read_b32 v16, v10")
            a("s_lshl_b32 s53, s2, 3")
            a("s_add_u32 s53, s53, %s" % S_WAVE)
            a("s_lshl_b32 s53, s53, 7")
            a("s_add_u32 s53, s53, %d" % (STAMP_OFF + 0x40000))
            a("v_lshl_add_u32 v11, v0, 2, s53")
            a("s_waitcnt lgkmcnt(0)")
            a("global_store_dword v11, v16, %s" % S_WS)
            a("v_mov_b32 v16, %s" % S_STEP)
            a("s_mov_b64 exec, -1")
            a("v_mov_b32 v35, %s" % S_STEP)
        if cfg.get("lite"):
            a("s_cmp_lg_u32 %s, 0" % S_WAVE)
            a("s_cbranch_scc1 L_end")
            a("s_memrealtime s[90:91]")
            a("s_lshl_b32 s53, s2, 3")
            a("s_add_u32 s53, s53, %d" % STAMP_OFF)
            a("v_mov_b32 v10, s53")
            a("s_waitcnt lgkmcnt(0)")
            a("v_mov_b32 v16, s64")
            a("v_mov_b32 v17, s90")
            a("s_mov_b64 exec, 1")
            a("global_store_dwordx2 v10, v[16:17], %s" % S_WS)
        if cfg.get("dbgstamp"):
            a("s_cmp_lg_u32 s2, %d" % cfg.get("dbgwg", 0))
            a("s_cbranch_scc1 L_nodbg")
            a("s_cmp_lg_u32 %s, 0" % S_WAVE)
            a("s_cbranch_scc1 L_nodbg")
            a("s_memrealtime s[90:91]")
            a("s_waitcnt lgkmcnt(0)")
            for k in range(1, 16):
                a("s_sub_u32 s53, s%d, s64" % (64 + k))
                a("v_mov_b32 %s, s53" % vr(16 + k))
            a("s_sub_u32 s53, s90, s64")
            a("v_mov_b32 v16, s53")
            a("v_mov_b32 v10, 0")
            a("s_mov_b64 exec, 1")
            for k in range(4):
                a("global_store_dwordx4 v10, %s, s[26:27] offset:%d sc1" % (vr(16 + 4 * k, 4), 16 * k))
            a("s_mov_b64 exec, -1")
            a("L_nodbg:")
        if cfg.get("diag"):
            a("s_memrealtime s[90:91]")
            a("s_waitcnt lgkmcnt(0)")
            a("s_lshl_b32 s53, s2, 3")
            a("s_add_u32 s53, s53, %s" % S_WAVE)
            a("s_lshl_b32 s53, s53, 7")
            a("s_add_u32 s53, s53, %d" % STAMP_OFF)
            a("v_mov_b32 v10, s53")
            for k in range(16):
                a("v_mov_b32 %s, s%d" % (vr(16 + k), 64 + k))
            a("v_mov_b32 v32, s90")
            a("v_mov_b32 v33, %s" % S_SPIN)
            a("v_mov_b32 v34, %s" % S_XCC)
            a("v_mov_b32 v35, %s" % S_STEP)
            a("s_mov_b64 exec, 1")
            for k in range(5):
                a("global_store_dwordx4 v10, %s, %s offset:%d" % (vr(16 + 4 * k, 4), S_WS, 16 * k))
        a("L_end:")
        a("s_endpgm")

        lines = insert_nops(a.lines)
        probs = check_edges(lines)
        if probs:
            print("\n".join(probs))
            raise SystemExit("hazards across branch edges")
        return "\n".join(lines) + "\n"


HEADER = open("sequential_preLN__gqa_block_cached__dense_activation_gelu__decode.s.ref").read().split("; Override launch")[0]


DESCRIPTION = """;
;  * the 32 workgroups with id % 8 == 0 hold wo, w1, w2 in AGPRs and run the tail: combine the partial softmaxes of one
"""


def generate(cfg):
    body = Gen(cfg).build()
    txt = HEADER
    txt += "; @launch grid=(256,1,1) block=(512,1,1) lds=%d\n" % LDS_BYTES
    txt += DESCRIPTION
    txt += '.amdgcn_target "amdgcn-amd-amdhsa--gfx950"\n.text\n' + kernel_header(NAME) + body
    txt += '.section .rodata,"a"\n.p2align 6\n' + kernel_desc(NAME, 256, 102, 128, 104)
    return txt


if __name__ == "__main__":
    import json
    cfg = json.loads(sys.argv[2]) if len(sys.argv) > 2 else {}
    out = sys.argv[1] if len(sys.argv) > 1 else "main"
    from asmlib import build
    txt = generate(cfg)
    build(txt, NAME, 13, out)
    print("built", out, len(txt.splitlines()), "lines")
```

```python
import re

TRANS = ("v_exp_f32", "v_log_f32", "v_rcp_f32", "v_rsq_f32", "v_sqrt_f32", "v_sin_f32", "v_cos_f32")


def regs_of(op):
    op = op.strip()
    op = op.lstrip("-")
    if op.startswith("abs(") or op.startswith("|"):
        op = op.replace("abs(", "").replace(")", "").replace("|", "")
    m = re.fullmatch(r"([vas])(\d+)", op)
    if m:
        return {(m.group(1), int(m.group(2)))}
    m = re.fullmatch(r"([vas])\[(\d+):(\d+)\]", op)
    if m:
        return {(m.group(1), k) for k in range(int(m.group(2)), int(m.group(3)) + 1)}
    if op == "vcc":
        return {("s", 106), ("s", 107)}
    if op == "vcc_lo":
        return {("s", 106)}
    if op == "vcc_hi":
        return {("s", 107)}
    if op == "exec":
        return {("s", 126), ("s", 127)}
    if op == "exec_lo":
        return {("s", 126)}
    if op == "exec_hi":
        return {("s", 127)}
    if op == "m0":
        return {("s", 124)}
    return set()


class Ins:
    def __init__(self, text):
        self.text = text
        t = text.split(";")[0].strip()
        self.is_label = t.endswith(":")
        self.empty = (t == "") or t.startswith(".")
        self.mn = ""
        self.ops = []
        self.defs = set()
        self.uses = set()
        self.kind = "none"
        self.states = 0
        if self.is_label or self.empty:
            return
        parts = t.split(None, 1)
        self.mn = parts[0]
        rest = parts[1] if len(parts) > 1 else ""
        raw = []
        if rest:
            depth = 0
            cur = ""
            for ch in rest:
                if ch in "[(":
                    depth += 1
                elif ch in "])":
                    depth -= 1
                if ch == "," and depth == 0:
                    raw.append(cur.strip())
                    cur = ""
                else:
                    cur += ch
            raw.append(cur.strip())
        ops = []
        mods = ""
        for k, o in enumerate(raw):
            if k == len(raw) - 1 and " " in o and not o.startswith("hwreg"):
                first, more = o.split(None, 1)
                ops.append(first)
                mods = more
            else:
                ops.append(o)
        self.ops = ops
        self.mods = mods
        self.states = 1
        mn = self.mn
        R = [regs_of(o) for o in ops]
        allr = lambda idx: set().union(*[R[k] for k in idx]) if idx else set()
        n = len(ops)
        if mn == "s_nop":
            self.kind = "nop"
            self.states = int(ops[0], 0) + 1
        elif mn.startswith("v_mfma"):
            self.kind = "mfma"
            self.defs = R[0]
            self.A, self.B = R[1], R[2]
            self.C = R[3] if n > 3 else set()
            self.uses = self.A | self.B | self.C
        elif mn.startswith("v_"):
            self.kind = "valu"
            self.trans = mn.replace("_e32", "").replace("_e64", "") in TRANS
            self.dpp = ("_dpp" in mn) or ("row_" in mods) or ("quad_perm" in mods)
            self.permlane = mn.startswith("v_permlane")
            self.readlane = mn.startswith("v_readlane") or mn.startswith("v_readfirstlane")
            if self.permlane:
                self.defs = R[0] | R[1]
                self.uses = R[0] | R[1]
            elif mn.startswith("v_add_co") or mn.startswith("v_sub_co") or mn.startswith("v_addc_co"):
                self.defs = R[0] | R[1]
                self.uses = allr(range(2, n))
            else:
                self.defs = R[0]
                self.uses = allr(range(1, n))
                if mn.startswith("v_fmac") or mn.startswith("v_dot2c") or mn.startswith("v_writelane") or self.dpp:
                    self.uses |= R[0]
            self.cndmask = mn.startswith("v_cndmask")
        elif mn.startswith("buffer_") or mn.startswith("global_"):
            self.kind = "vmem"
            lds = "lds" in mods.split() or "_lds_" in mn
            store = "_store" in mn
            atomic = "_atomic" in mn
            self.wide_store = store and (mn.endswith("x4") or mn.endswith("x3"))
            if mn in ("buffer_wbl2", "buffer_inv"):
                pass
            elif lds:
                self.uses = allr(range(n)) | {("s", 124)}
                self.lds_dma = True
            elif store:
                self.uses = allr(range(n))
                self.data = R[0] if mn.startswith("buffer_") else R[1]
            elif atomic:
                self.uses = allr(range(n))
                if "sc0" in mods.split():
                    self.defs = R[0]
            else:
                self.defs = R[0]
                self.uses = allr(range(1, n))
        elif mn.startswith("ds_"):
            self.kind = "ds"
            if mn.startswith("ds_read") or mn.startswith("ds_bpermute") or mn.startswith("ds_swizzle") or mn.startswith("ds_permute"):
                self.defs = R[0]
                self.uses = allr(range(1, n))
            else:
                self.uses = allr(range(n))
        elif mn.startswith("s_"):
            self.kind = "salu"
            if mn.startswith("s_cmp") or mn.startswith("s_cbranch") or mn in ("s_branch", "s_waitcnt", "s_barrier", "s_endpgm", "s_sleep", "s_setprio"):
                self.uses = allr(range(n))
            else:
                self.defs = R[0] if n else set()
                self.uses = allr(range(1, n))
                if "saveexec" in mn:
                    self.defs |= {("s", 126), ("s", 127)}
                    self.uses |= {("s", 126), ("s", 127)}


def isv(r):
    return r[0] in ("v", "a")


def need(p, c):
    n = 0
    pk, ck = p.kind, c.kind
    if pk == "valu":
        vd = {r for r in p.defs if isv(r)}
        sd = {r for r in p.defs if r[0] == "s"}
        if ck == "mfma" and vd & c.uses:
            n = max(n, 2)
        if ck == "valu":
            if c.permlane and vd & c.uses:
                n = max(n, 2)
            if c.dpp and vd & c.uses:
                n = max(n, 2)
            if c.readlane and vd & c.uses:
                n = max(n, 1)
            if p.trans and not c.trans and vd & c.uses:
                n = max(n, 1)
            if p.trans and c.trans and vd & c.uses:
                n = max(n, 1)
            if sd & c.uses:
                n = max(n, 4 if (c.readlane or c.mn.startswith("v_writelane")) else 2)
        if ck == "vmem" and sd & c.uses:
            n = max(n, 5)
        if ck == "salu" and sd & c.uses and not c.mn.startswith("s_cbranch"):
            n = max(n, 1)
    if pk == "mfma":
        d = p.defs
        if ck == "mfma":
            if d & (c.A | c.B):
                n = max(n, 8)
            if d & c.C and c.C != d:
                n = max(n, 6)
        elif ck == "valu":
            if d & (c.uses | c.defs):
                n = max(n, 8)
            if p.C & {r for r in c.defs if isv(r)}:
                n = max(n, 3)
        elif ck in ("vmem", "ds"):
            if d & (c.uses | c.defs):
                n = max(n, 8)
    if pk == "salu" and ("s", 124) in p.defs:
        if ck == "vmem" and getattr(c, "lds_dma", False):
            n = max(n, 1)
    if pk == "vmem" and getattr(p, "wide_store", False):
        if ck == "valu" and p.data & c.defs:
            n = max(n, 2)
        elif ck in ("ds", "vmem") and p.data & c.defs:
            n = max(n, 1)
    return n


WINDOW = 12


def insert_nops(lines):
    out = []
    hist = []
    for ln in lines:
        ins = Ins(ln.strip())
        if ins.is_label or ins.empty:
            out.append(ln)
            continue
        req = 0
        dist = 0
        for p in reversed(hist):
            if dist >= WINDOW:
                break
            r = need(p, ins)
            if r > dist:
                req = max(req, r - dist)
            dist += p.states
        if req > 0:
            nop = Ins("s_nop %d" % (req - 1))
            out.append("    s_nop %d" % (req - 1))
            hist.append(nop)
        out.append(ln)
        hist.append(ins)
        if ins.mn in ("s_branch", "s_endpgm"):
            hist = []
        hist = hist[-24:]
    return out


def check_edges(lines):
    ins = [Ins(l.strip()) for l in lines]
    labels = {}
    for k, i in enumerate(ins):
        if i.is_label:
            labels[i.text.split(";")[0].strip()[:-1]] = k
    probs = []
    for k, i in enumerate(ins):
        if i.mn.startswith("s_cbranch") or i.mn == "s_branch":
            tgt = labels.get(i.ops[0])
            if tgt is None:
                continue
            before = []
            j = k
            tot = 0
            while j >= 0 and tot < WINDOW:
                x = ins[j]
                if not (x.is_label or x.empty):
                    before.append(x)
                    tot += x.states
                    if j != k and x.mn in ("s_branch", "s_endpgm"):
                        break
                j -= 1
            after = []
            j = tgt
            tot = 0
            while j < len(ins) and tot < WINDOW:
                x = ins[j]
                if not (x.is_label or x.empty):
                    after.append(x)
                    tot += x.states
                    if x.mn in ("s_branch", "s_endpgm"):
                        break
                j += 1
            dist_after = 0
            for c in after:
                dist = dist_after
                for p in before:
                    r = need(p, c)
                    if r > dist:
                        probs.append("edge %s -> %s: '%s' then '%s' needs %d has %d" % (i.text.strip(), i.ops[0], p.text.strip(), c.text.strip(), r, dist))
                    dist += p.states
                dist_after += c.states
    return probs
```
